```python
import torch

def _softmax(x, axis=-1):
    return torch.softmax(x, dim=axis)
def _gelu(x):
    return torch.nn.functional.gelu(x, approximate="tanh")
def _silu(x):
    return torch.nn.functional.silu(x)
def _sigmoid(x):
    return torch.sigmoid(x)
def _layernorm(x, axis=-1, eps=1e-5):
    m = x.mean(dim=axis, keepdim=True)
    v = x.var(dim=axis, keepdim=True, unbiased=False)
    return (x - m) / torch.sqrt(v + eps)
def _scatter_add(tgt, idx, src, axis=0):
    return tgt.clone().index_add_(axis, idx, src)
def _segment_sum(src, seg, n):
    out = torch.zeros((n,) + src.shape[1:], dtype=src.dtype)
    return out.index_add_(0, seg, src)
def _pad(x, pw):
    flat = tuple(v for pair in reversed(pw) for v in pair)
    return torch.nn.functional.pad(x, flat)

kernel_name = 'sequential_preLN__sliding_local_dilated__mixer_token_mlp__prompt'

def setup_inputs():

    _w = (lambda a: (lambda t: t.to(torch.bfloat16) if t.is_floating_point() else t)(torch.as_tensor(a)))
    def _A_setup():
        B, S, D = 1, 2048, 512
        return {
            "x": _w((lambda *s: torch.randn(*s, dtype=torch.bfloat16) * 0.05)(B, S, D)),
            "wqkv": _w((lambda *s: torch.randn(*s, dtype=torch.bfloat16) * 0.05)(D, 3 * D)),
            "wo": _w((lambda *s: torch.randn(*s, dtype=torch.bfloat16) * 0.05)(D, D)),
        }
    _A_in = _A_setup()

    def _B_setup():
        B, S, D, F = 1, 2048, 512, 1792
        return {
            "x": _w((lambda *s: torch.randn(*s, dtype=torch.bfloat16) * 0.05)(B, S, D)),
            "w1": _w((lambda *s: torch.randn(*s, dtype=torch.bfloat16) * 1.6)(S, F) * (S ** -0.5)),
            "b1": _w((lambda *s: torch.randn(*s, dtype=torch.bfloat16) * 12.8)(F) * 0.02),
            "w2": _w((lambda *s: torch.randn(*s, dtype=torch.bfloat16) * 0.8)(F, S) * (F ** -0.5)),
            "b2": _w((lambda *s: torch.randn(*s, dtype=torch.bfloat16) * 12.8)(S) * 0.02),
        }
    _B_in = _B_setup()

    return {
        "A_x": _A_in["x"],
        "A_wqkv": _A_in["wqkv"],
        "A_wo": _A_in["wo"],
        "B_x": _B_in["x"],
        "B_w1": _B_in["w1"],
        "B_b1": _B_in["b1"],
        "B_w2": _B_in["w2"],
        "B_b2": _B_in["b2"],
    }

def reference(A_x, A_wqkv, A_wo, B_x, B_w1, B_b1, B_w2, B_b2):
    def _A_ref(x, wqkv, wo):
        B, S, D = x.shape
        H = 32; Dh = D // H
        W, dil = 8, 2
        qkv = (lambda x, *d: x.permute(*d))((x @ wqkv).reshape(B, S, 3, H, Dh), 2, 0, 3, 1, 4)
        q, k, v = qkv[0], qkv[1], qkv[2]
        scale = Dh ** -0.5
        pos = torch.arange(S)
        off = torch.arange(W) * dil
        idx = pos[:, None] - off[None, :]
        mask = idx >= 0
        idx_c = torch.where(mask, idx, 0).reshape(-1)
        kg = k[:, :, idx_c, :].reshape(B, H, S, W, Dh)
        vg = v[:, :, idx_c, :].reshape(B, H, S, W, Dh)
        logits = torch.einsum("bhsd,bhswd->bhsw", q, kg) * scale
        logits = torch.where(mask[None, None, :, :], logits, -1e9)
        attn = _softmax(logits, axis=-1)
        o = torch.einsum("bhsw,bhswd->bhsd", attn, vg)
        return (lambda x, *d: x.permute(*d))(o, 0, 2, 1, 3).reshape(B, S, D) @ wo

    def _B_ref(x, w1, b1, w2, b2):
        B, S, D = x.shape
        h = _layernorm(x, axis=-1)
        u = torch.einsum("bsd,sf->bdf", h, w1) + b1
        u = _gelu(u)
        y = torch.einsum("bdf,fs->bds", u, w2) + b2
        return (lambda x, *d: x.permute(*d))(y, 0, 2, 1)

    x = A_x
    h = x + _A_ref(_layernorm(x, axis=-1), A_wqkv, A_wo)
    h2 = h + _B_ref(_layernorm(h, axis=-1), B_w1, B_b1, B_w2, B_b2)
    return h2
```

```python
import re

TRANS = ("v_exp_f32", "v_log_f32", "v_rcp_f32", "v_rsq_f32", "v_sqrt_f32", "v_sin_f32", "v_cos_f32")

def parse_regs(tok):
    tok = tok.strip()
    tok = re.sub(r"^-", "", tok)
    m = re.match(r"^abs\((.*)\)$", tok)
    if m: tok = m.group(1)
    m = re.match(r"^\|(.*)\|$", tok)
    if m: tok = m.group(1)
    m = re.match(r"^([vas])(\d+)$", tok)
    if m: return [(m.group(1), int(m.group(2)))]
    m = re.match(r"^([vas])\[(\d+):(\d+)\]$", tok)
    if m: return [(m.group(1), i) for i in range(int(m.group(2)), int(m.group(3)) + 1)]
    if tok == "vcc": return [("s", 106), ("s", 107)]
    if tok == "vcc_lo": return [("s", 106)]
    if tok == "vcc_hi": return [("s", 107)]
    if tok == "m0": return [("s", 124)]
    if tok == "exec": return [("s", 126), ("s", 127)]
    if tok == "exec_lo": return [("s", 126)]
    if tok == "exec_hi": return [("s", 127)]
    return []

class Ins:
    __slots__ = ("text", "op", "kind", "w", "r", "c", "passes", "ws", "dpp", "wide_store", "lds_dma", "ab", "d")
    def __init__(self, text):
        self.text = text
        t = text.split(";")[0].strip()
        parts = t.split(None, 1)
        op = parts[0]
        self.op = op
        rest = parts[1] if len(parts) > 1 else ""
        ops = []; cur = ""; depth = 0
        for ch in rest:
            if ch == "[": depth += 1
            if ch == "]": depth -= 1
            if ch == "," and depth == 0: ops.append(cur); cur = ""
            else: cur += ch
        if cur.strip(): ops.append(cur)
        mods = ""
        if ops:
            last = ops[-1].strip().split(None, 1)
            ops[-1] = last[0]
            mods = last[1] if len(last) > 1 else ""
        ops = [o.strip() for o in ops]
        R = [parse_regs(o) for o in ops]
        self.w = set(); self.r = set(); self.c = set(); self.ab = set(); self.d = None
        self.passes = 0; self.ws = 1; self.dpp = ("row_" in mods or "quad_perm" in mods or "_dpp" in op)
        self.wide_store = False; self.lds_dma = False
        flat = lambda L: set(x for l in L for x in l)
        if op == "s_nop":
            self.kind = "nop"; self.ws = int(ops[0], 0) + 1
        elif op.startswith("v_mfma"):
            self.kind = "mfma"
            self.passes = 8 if "32x32" in op else 4
            self.w = flat(R[:1]); self.d = tuple(R[0]); self.ab = flat(R[1:3]); self.c = flat(R[3:4]); self.r = self.ab | self.c
        elif op.startswith("v_cmp"):
            self.kind = "valu"; self.w = flat(R[:1]); self.r = flat(R[1:])
        elif op.startswith("v_permlane"):
            self.kind = "valu"; self.w = flat(R[:2]); self.r = flat(R[:2])
        elif op.startswith("v_"):
            self.kind = "valu"; self.w = flat(R[:1]); self.r = flat(R[1:])
            if op.startswith(("v_fmac", "v_dot2c", "v_pk_fmac")) or self.dpp: self.r |= self.w
            if op.startswith(("v_add_co", "v_sub_co", "v_addc_co", "v_subb_co")): self.w |= flat(R[1:2]); self.r = flat(R[2:])
            if op.startswith("v_cndmask") and len(ops) == 3: self.r |= {("s", 106), ("s", 107)}
        elif op.startswith(("buffer_", "global_")):
            self.kind = "vmem"
            if "lds" in mods.split() or "_lds_" in op:
                self.lds_dma = True; self.r = flat(R) | {("s", 124)}
            elif "store" in op or "atomic" in op:
                self.r = flat(R)
                if "x3" in op or "x4" in op:
                    self.wide_store = True
                    self.c = flat(R[:1]) if op.startswith("buffer_") else flat(R[1:2])
            else:
                self.w = flat(R[:1]); self.r = flat(R[1:])
        elif op.startswith("ds_"):
            self.kind = "ds"
            if "read" in op or "permute" in op or "swizzle" in op:
                self.w = flat(R[:1]); self.r = flat(R[1:])
            else:
                self.r = flat(R)
        elif op.startswith("s_"):
            self.kind = "salu"
            if op.startswith(("s_cmp", "s_cbranch", "s_branch", "s_waitcnt", "s_barrier", "s_endpgm", "s_setprio", "s_sleep", "s_bitcmp")):
                self.r = flat(R)
            else:
                self.w = flat(R[:1]); self.r = flat(R[1:])
                if "saveexec" in op: self.w |= {("s", 126), ("s", 127)}
        else:
            raise ValueError("unknown instr " + text)

def need(p, c):
    n = 0
    pv = {x for x in p.w if x[0] in "va"}
    ps = {x for x in p.w if x[0] == "s"}
    if p.kind == "valu":
        if c.kind == "mfma" and pv & c.r: n = max(n, 2)
        if c.kind == "valu":
            if c.op.startswith("v_permlane") and pv & c.r: n = max(n, 2)
            if c.dpp and pv & c.r: n = max(n, 2)
            if c.op.startswith(("v_readfirstlane", "v_readlane")) and pv & c.r: n = max(n, 1)
            if p.op.startswith(TRANS) and pv & c.r: n = max(n, 1)
            if ps & c.r: n = max(n, 4 if c.op.startswith(("v_readlane", "v_writelane")) else 2)
            if p.op.startswith("v_dot") and pv & (c.r | c.w):
                n = max(n, 3)
        if c.kind in ("vmem",) and ps & c.r: n = max(n, 5)
        if c.kind in ("vmem", "ds", "mfma") and p.op.startswith(TRANS) and pv & c.r: n = max(n, 2)
        if c.kind == "salu" and ps & c.r: n = max(n, 1)
    if p.kind == "mfma":
        big = 12 if p.passes == 8 else 8
        ovl = 10 if p.passes == 8 else 6
        if c.kind == "mfma":
            if pv & c.ab: n = max(n, big)
            if pv & c.c:
                same = (c.passes == p.passes and set(p.d) == c.c and c.op == p.op)
                if not same: n = max(n, ovl)
            if pv & c.w and not (pv & c.c): n = max(n, ovl)
        elif c.kind in ("valu", "vmem", "ds"):
            if pv & (c.r | c.w): n = max(n, big)
            if c.kind == "valu" and (p.c & c.w): n = max(n, 7 if p.passes == 8 else 3)
            if c.kind != "valu" and (p.c & c.w): n = max(n, 7 if p.passes == 8 else 3)
    if p.kind == "salu":
        if ("s", 124) in p.w and c.lds_dma: n = max(n, 1)
    if p.kind == "vmem" and p.wide_store:
        if p.c & c.w: n = max(n, 2)
    return n

class Asm:
    def __init__(self):
        self.items = []
        self.vm = []
        self.lg = []
        self.nnop = 0
    def raw(self, s): self.items.append(s)
    def label(self, l): self.items.append(l + ":")
    def comment(self, s): self.items.append("  ; " + s)
    def e(self, text):
        for line in text.strip().split("\n"):
            line = line.strip()
            if not line: continue
            ins = Ins(line)
            dist = 0; req = 0
            for p in reversed(self.items):
                if isinstance(p, str): continue
                n = need(p, ins)
                if n - dist > req: req = n - dist
                dist += p.ws
                if dist >= 12: break
            if req > 0:
                self.items.append(Ins(f"s_nop {req-1}")); self.nnop += req
            self.items.append(ins)
    def vmem(self, text, tag=None):
        self.e(text); self.vm.append(tag)
        assert len(self.vm) <= 63, "vmcnt overflow"
    def ds(self, text, tag=None):
        self.e(text); self.lg.append(tag)
    def _cnt(self, lst, tags):
        if not isinstance(tags, (list, set)): tags = [tags]
        idx = -1
        for i, t in enumerate(lst):
            if t in tags: idx = i
        return idx
    def wait_vm(self, tags=None):
        if tags is None:
            self.e("s_waitcnt vmcnt(0)"); self.vm = []; return
        idx = self._cnt(self.vm, tags)
        if idx < 0: return
        n = len(self.vm) - 1 - idx
        self.e(f"s_waitcnt vmcnt({n})"); self.vm = self.vm[idx + 1:]
    def wait_lg(self, tags=None):
        if tags is None:
            self.e("s_waitcnt lgkmcnt(0)"); self.lg = []; return
        idx = self._cnt(self.lg, tags)
        if idx < 0: return
        n = len(self.lg) - 1 - idx
        if n > 15: n = 15; idx = len(self.lg) - 1 - n
        self.e(f"s_waitcnt lgkmcnt({n})"); self.lg = self.lg[idx + 1:]
    def text(self):
        out = []
        for it in self.items:
            out.append(it if isinstance(it, str) else "  " + it.text)
        return "\n".join(out) + "\n"

class Regs:
    def __init__(self, n, start=0):
        self.free = [True] * n
        for i in range(start): self.free[i] = False
        self.hi = start
    def alloc(self, n=1, align=None):
        if align is None: align = 1 if n == 1 else 2
        i = 0
        while True:
            if i + n > len(self.free): raise RuntimeError("out of regs")
            if all(self.free[i:i + n]): break
            i += align
        for k in range(i, i + n): self.free[k] = False
        self.hi = max(self.hi, i + n)
        return i
    def release(self, i, n=1):
        for k in range(i, i + n):
            assert not self.free[k]; self.free[k] = True

def vr(i, n=1, p="v"):
    return f"{p}{i}" if n == 1 else f"{p}[{i}:{i+n-1}]"
def ar(i, n=1): return vr(i, n, "a")
def sr(i, n=1): return vr(i, n, "s")
```

```python
from asm import *
import gen as G1
from gen import *
import struct, math

L_H = 16384
L_WO = 24576
L_STG = 90112
L_RED = 24576
SPIN = 30000

def f32bits(x): return struct.unpack("<I", struct.pack("<f", x))[0]

def hooks(g):
    g.early = early; g.flag = flag; g.post_loop = post_loop
    g.nl = 0
    V = g.V
    g.sSpin = g.S.alloc()
    g.a.e(f"s_mov_b32 s{g.sSpin}, 0")
    g.vOa = V.alloc(); g.vSa = V.alloc(); g.vHa = V.alloc(); g.vUa = V.alloc()
    g.vFl = V.alloc(); g.vFa = V.alloc(); g.vSl = V.alloc(); g.vXr = V.alloc(8)
    g.keepv = [g.vOa, g.vSa, g.vHa, g.vUa, g.vFl, g.vFa, g.vSl] + list(range(g.vXr, g.vXr + 8))

def newlabel(g, p):
    g.nl += 1
    return f"L_{p}{g.nl}"

def early(g):
    a, V, S = g.a, g.V, g.S; e = a.e
    vT0, vT1, vT2, vT3 = g.vT; sT = g.sT
    sU = S.alloc()
    oaddr(g, g.vOa); g.oaddr_done = True
    e(f"s_lshl_b32 s{sT}, s{g.sHi}, 2")
    e(f"s_add_u32 s{sT}, s{sT}, s{g.sW}")
    e(f"s_lshl_b32 s{sT}, s{sT}, 10")
    g.sStb = S.alloc()
    e(f"s_add_u32 s{g.sStb}, s{sT}, {WS_ST}")
    e(f"s_lshl_b32 s{sU}, s{g.sLo}, 3")
    e(f"s_add_u32 s{sT}, s{g.sStb}, s{sU}")
    e(f"v_lshl_add_u32 v{g.vSa}, v{g.vN}, 6, s{sT}")
    g.sT2i = S.alloc()
    e(f"s_lshr_b32 s{g.sT2i}, s{g.sHi}, 2")
    e(f"s_lshl_b32 s{g.sT2i}, s{g.sT2i}, 4")
    e(f"s_lshr_b32 s{sT}, s{g.sW}, 1")
    e(f"s_lshl_b32 s{sT}, s{sT}, 3")
    e(f"s_add_u32 s{g.sT2i}, s{g.sT2i}, s{sT}")
    e(f"s_and_b32 s{sT}, s{g.sHi}, 3")
    e(f"s_lshl_b32 s{sT}, s{sT}, 1")
    e(f"s_add_u32 s{g.sT2i}, s{g.sT2i}, s{sT}")
    e(f"s_and_b32 s{sT}, s{g.sW}, 1")
    e(f"s_add_u32 s{g.sT2i}, s{g.sT2i}, s{sT}")
    e(f"s_lshl_b32 s{sT}, s{g.sLo}, 7")
    e(f"s_add_u32 s{sT}, s{sT}, s{g.sT2i}")
    e(f"s_lshl_b32 s{sT}, s{sT}, 11")
    e(f"s_add_u32 s{sT}, s{sT}, {WS_HH}")
    e(f"v_lshl_add_u32 v{g.vHa}, v{g.vL}, 4, s{sT}")
    g.sFt = S.alloc()
    e(f"s_mul_i32 s{g.sFt}, s{g.sXr}, 7")
    e(f"s_add_u32 s{g.sFt}, s{g.sFt}, s{g.sQh}")
    e(f"s_mul_i32 s{sT}, s{g.sLo}, 28")
    e(f"s_add_u32 s{sT}, s{sT}, s{g.sFt}")
    e(f"s_lshl_b32 s{sT}, s{sT}, 13")
    e(f"s_lshr_b32 s{sU}, s{g.sW}, 1")
    e(f"s_lshl_b32 s{sU}, s{sU}, 12")
    e(f"s_add_u32 s{sT}, s{sT}, s{sU}")
    e(f"s_and_b32 s{sU}, s{g.sW}, 1")
    e(f"s_lshl_b32 s{sU}, s{sU}, 10")
    e(f"s_add_u32 s{sT}, s{sT}, s{sU}")
    e(f"s_add_u32 s{sT}, s{sT}, {WS_UF}")
    e(f"s_cmp_lt_u32 s{g.sQh}, 7")
    e(f"s_cselect_b32 s{sT}, s{sT}, {WS_SIZE}")
    e(f"v_lshl_add_u32 v{g.vUa}, v{g.vL}, 4, s{sT}")
    vS = V.alloc(4)
    for i in range(4): e(f"v_mov_b32 v{vS+i}, -1")
    ws = sr(g.sWS, 4)
    a.vmem(f"buffer_store_dwordx4 {vr(vS,4)}, v{g.vOa}, {ws}, 0 offen sc1", "sent")
    a.vmem(f"buffer_store_dwordx4 {vr(vS,4)}, v{g.vOa}, {ws}, s{g.sO2} offen sc1", "sent")
    e("s_mov_b64 exec, 0xffff")
    a.vmem(f"buffer_store_dwordx2 {vr(vS,2)}, v{g.vSa}, {ws}, 0 offen sc1", "sent")
    e("s_mov_b64 exec, -1")
    a.vmem(f"buffer_store_dwordx4 {vr(vS,4)}, v{g.vHa}, {ws}, 0 offen sc1", "sent")
    a.vmem(f"buffer_store_dwordx4 {vr(vS,4)}, v{g.vHa}, {ws}, 0 offen offset:1024 sc1", "sent")
    a.vmem(f"buffer_store_dwordx4 {vr(vS,4)}, v{g.vUa}, {ws}, 0 offen sc1", "sent")
    a.vmem(f"buffer_store_dwordx4 {vr(vS,4)}, v{g.vUa}, {ws}, 0 offen offset:2048 sc1", "sent")
    g.vSent = vS
    S.release(sU)

def flag(g):
    a = g.a; e = a.e; vT0, vT1 = g.vT[:2]
    assert "sent" not in a.vm
    e(f"s_lshl_b32 s{g.sT}, s{g.sW}, 8")
    e(f"s_add_u32 s{g.sT}, s{g.sT}, s2")
    e(f"v_mov_b32 v{vT0}, s{g.sT}")
    e(f"v_mov_b32 v{vT1}, 1")
    e("s_mov_b64 exec, 1")
    a.vmem(f"buffer_store_byte v{vT1}, v{vT0}, {sr(g.sDBG,4)}, 0 offen sc1", "flag")
    e("s_mov_b64 exec, -1")

def post_loop(g):
    a, V, S = g.a, g.V, g.S; e = a.e
    vT0, vT1, vT2, vT3 = g.vT
    e(f"v_lshlrev_b32 v{g.vFa}, 2, v{g.vL}")
    a.vmem(f"buffer_load_dword v{g.vFl}, v{g.vFa}, {sr(g.sDBG,4)}, 0 offen sc1", "fl")
    vA = V.alloc(); sO = S.alloc()
    e(f"v_lshrrev_b32 v{vT0}, 3, v{g.vL}")
    e(f"v_lshlrev_b32 v{vA}, 10, v{vT0}")
    e(f"v_and_b32 v{vT0}, 7, v{g.vL}")
    e(f"v_lshlrev_b32 v{vT1}, 1, v{g.vG}")
    e(f"v_xor_b32 v{vT0}, v{vT0}, v{vT1}")
    e(f"v_lshl_add_u32 v{vA}, v{vT0}, 4, v{vA}")
    e(f"s_lshl_b32 s{sO}, s{g.sW}, 13")
    e(f"s_lshl_b32 s{g.sT}, s{g.sLo}, 7")
    e(f"s_add_u32 s{sO}, s{sO}, s{g.sT}")
    for i in range(16):
        e(f"s_add_u32 m0, s{g.sW1k}, {L_WO + 4096*i}")
        a.vmem(f"buffer_load_dwordx4 v{vA}, {sr(g.sWO,4)}, s{sO} offen lds", "wo")
        if i < 15: e(f"s_add_u32 s{sO}, s{sO}, 32768")
    V.release(vA); S.release(sO)
    e(f"s_and_b32 s{g.sT}, s{g.sW}, 1")
    e(f"s_lshl_b32 s{g.sT}, s{g.sT}, 5")
    e(f"s_lshr_b32 s{g.sT2}, s{g.sW}, 1")
    e(f"s_add_u32 s{g.sT}, s{g.sT}, s{g.sT2}")
    e(f"v_lshl_add_u32 v{g.vSl}, v{g.vN}, 1, s{g.sT}")
    e(f"s_lshl_b32 s{g.sT}, s{g.sHi}, 16")
    e(f"s_lshl_b32 s{g.sT2}, s{g.sLo}, 7")
    e(f"s_add_u32 s{g.sT}, s{g.sT}, s{g.sT2}")
    e(f"v_lshl_add_u32 v{vT0}, v{g.vSl}, 10, s{g.sT}")
    e(f"v_lshl_add_u32 v{vT0}, v{g.vG}, 3, v{vT0}")
    for mt in range(4):
        a.vmem(f"buffer_load_dwordx2 {vr(g.vXr+2*mt,2)}, v{vT0}, {sr(g.sX,4)}, 0 offen offset:{32*mt}", "xr")

def spin_head(g, name):
    s = g.sSpin
    lab = newlabel(g, name)
    g.a.label(lab)
    return s, lab

def spin_tail(g, s, lab, okbranch="s_cbranch_vccz"):
    e = g.a.e
    done = lab + "_ok"
    e(f"{okbranch} {done}")
    e(f"s_add_u32 s{s}, s{s}, 1")
    e(f"s_cmp_lt_u32 s{s}, {SPIN}")
    e(f"s_cbranch_scc1 {lab}")
    g.a.label(done)

def check_flags(g):
    a = g.a; e = a.e
    a.wait_vm("fl")
    sC = g.S.alloc()
    e(f"s_mov_b32 s{sC}, 0x01010101")
    e(f"v_cmp_ne_u32 vcc, s{sC}, v{g.vFl}")
    ok = newlabel(g, "flok")
    e(f"s_cbranch_vccz {ok}")
    s, lab = spin_head(g, "fl")
    saved = list(a.vm)
    a.vmem(f"buffer_load_dword v{g.vFl}, v{g.vFa}, {sr(g.sDBG,4)}, 0 offen sc1", "fl")
    a.wait_vm()
    e(f"v_cmp_ne_u32 vcc, s{sC}, v{g.vFl}")
    spin_tail(g, s, lab)
    a.vm = saved
    a.label(ok)
    g.S.release(sC)

def poll(g, name, voff, vdst):
    a = g.a; e = a.e
    s, lab = spin_head(g, name)
    a.vmem(f"buffer_load_dword v{vdst}, v{voff}, {sr(g.sWS,4)}, 0 offen sc1", "poll")
    a.wait_vm()
    e(f"v_cmp_eq_u32 vcc, -1, v{vdst}")
    spin_tail(g, s, lab)

def stage_weights(g, srd, voff, soffs, nsteps, fh_xor_addr, tagp):
    a = g.a; e = a.e
    sO = g.S.alloc()
    out = []
    BS = 8
    for b0 in range(0, nsteps, BS):
        steps = list(range(b0, min(b0 + BS, nsteps)))
        def issue(steps=steps, b0=b0):
            for t in steps:
                for h in range(2):
                    e(f"s_add_u32 m0, s{g.sStg}, {(t-b0)*2048 + h*1024}")
                    e(f"s_mov_b32 s{sO}, {soffs(t, h)}")
                    a.vmem(f"buffer_load_dwordx4 v{voff}, {sr(srd,4)}, s{sO} offen lds", (tagp, t))
        def drain(steps=steps, b0=b0):
            for t in steps:
                a.wait_vm((tagp, t))
                for sl in range(2):
                    for h in range(2):
                        a.ds(f"ds_read_b64_tr_b16 {ar((t*2+sl)*4 + 2*h, 2)}, v{fh_xor_addr[sl]} offset:{(t-b0)*2048 + h*1024}", "wtr")
            a.wait_lg()
        out.append((issue, drain))
    g.sStageTmp = sO
    return out

def tr_addr32(g, base_sgpr, xor_sgpr):
    a = g.a; e = a.e; vT0, vT1, vT2, vT3 = g.vT
    A = [g.V.alloc(), g.V.alloc()]
    e(f"v_lshrrev_b32 v{vT0}, 1, v{g.vG}")
    e(f"v_lshrrev_b32 v{vT1}, 2, v{g.vN}")
    e(f"v_lshl_add_u32 v{vT0}, v{vT0}, 2, v{vT1}")
    e(f"v_lshlrev_b32 v{vT0}, 7, v{vT0}")
    e(f"v_and_b32 v{vT1}, 1, v{g.vG}")
    e(f"v_lshl_add_u32 v{vT0}, v{vT1}, 5, v{vT0}")
    e(f"v_and_b32 v{vT1}, 3, v{g.vN}")
    e(f"v_lshl_add_u32 v{vT0}, v{vT1}, 3, v{vT0}")
    e(f"v_lshrrev_b32 v{vT1}, 3, v{g.vN}")
    e(f"v_lshl_add_u32 v{vT0}, v{vT1}, 6, v{vT0}")
    if xor_sgpr is not None:
        e(f"v_xor_b32 v{vT0}, s{xor_sgpr}, v{vT0}")
    e(f"v_add_u32 v{A[0]}, s{base_sgpr}, v{vT0}")
    e(f"v_xor_b32 v{A[1]}, 64, v{A[0]}")
    return A

def dma_voff(g, rowstride_bytes, sbase):
    e = g.a.e; vT0, vT1 = g.vT[:2]
    v = g.V.alloc()
    e(f"v_lshrrev_b32 v{vT0}, 3, v{g.vL}")
    e(f"v_mul_u32_u24 v{v}, {rowstride_bytes}, v{vT0}")
    e(f"v_and_b32 v{vT0}, 7, v{g.vL}")
    e(f"v_and_b32 v{vT1}, 1, v{g.vG}")
    e(f"v_lshlrev_b32 v{vT1}, 2, v{vT1}")
    e(f"v_xor_b32 v{vT0}, v{vT0}, v{vT1}")
    e(f"v_lshl_add_u32 v{v}, v{vT0}, 4, v{v}")
    e(f"v_add_u32 v{v}, s{sbase}, v{v}")
    return v

def allreduce2(g, s, q, t):
    e = g.a.e
    e(f"v_permlane32_swap_b32 v{s}, v{q}")
    e(f"v_add_f32 v{s}, v{s}, v{q}")
    e(f"v_mov_b32 v{t}, v{s}")
    e(f"v_permlane16_swap_b32 v{s}, v{t}")
    e(f"v_add_f32 v{s}, v{s}, v{t}")
    e(f"v_mov_b32 v{q}, v{s}")
    e(f"v_permlane32_swap_b32 v{s}, v{q}")

def phase2(g):
    a, V, S = g.a, g.V, g.S; e = a.e
    vT0, vT1, vT2, vT3 = g.vT; vL, vN, vG = g.vL, g.vN, g.vG
    ws = sr(g.sWS, 4)
    vOl = V.alloc(); vOi = V.alloc(); vP = V.alloc()
    e(f"s_lshl_b32 s{g.sT}, s{g.sT2i}, 14")
    if WS_OF: e(f"s_add_u32 s{g.sT}, s{g.sT}, {WS_OF}")
    e(f"v_lshl_add_u32 v{vOl}, v{vL}, 4, s{g.sT}")
    e(f"v_lshl_add_u32 v{vOi}, v{vL}, 8, s{g.sT}")
    vWa = [V.alloc() for _ in range(4)]
    e(f"v_lshrrev_b32 v{vT0}, 1, v{vG}")
    e(f"v_and_b32 v{vT1}, 1, v{vG}")
    e(f"v_lshlrev_b32 v{vT0}, 4, v{vT0}")
    e(f"v_lshl_add_u32 v{vT0}, v{vT1}, 2, v{vT0}")
    e(f"v_lshrrev_b32 v{vT2}, 2, v{vN}")
    e(f"v_add_u32 v{vT0}, v{vT0}, v{vT2}")
    e(f"v_lshlrev_b32 v{vT0}, 7, v{vT0}")
    e(f"v_and_b32 v{vT2}, 3, v{vN}")
    e(f"v_lshl_add_u32 v{vT0}, v{vT2}, 3, v{vT0}")
    e(f"v_lshrrev_b32 v{vT2}, 3, v{vN}")
    e(f"v_lshl_add_u32 v{vT1}, v{vT1}, 1, v{vT2}")
    e(f"v_lshl_add_u32 v{vT0}, v{vT1}, 5, v{vT0}")
    e(f"v_add_u32 v{vWa[0]}, {L_WO}, v{vT0}")
    for mt in range(1, 4): e(f"v_xor_b32 v{vWa[mt]}, {32*mt}, v{vWa[0]}")
    acc = V.alloc(16, 4); xi = V.alloc(16, 4)
    a.wait_vm("xr")
    for r in range(8):
        e(f"v_lshlrev_b32 v{xi+2*r}, 16, v{g.vXr+r}")
        e(f"v_and_b32 v{xi+2*r+1}, 0xffff0000, v{g.vXr+r}")
    check_flags(g)
    a.wait_vm("wo"); e("s_barrier")
    OF = V.alloc(64, 4); NB = 3
    AF = [V.alloc(16, 4) for _ in range(NB)]
    vMx = V.alloc()
    def rd(k):
        for mt in range(4):
            for h in range(2):
                a.ds(f"ds_read_b64_tr_b16 {vr(AF[k%NB]+4*mt+2*h,2)}, v{vWa[mt]} offset:{k*4096+h*1024}", ("wf", k))
    s, lab = spin_head(g, "p2")
    poll(g, "op", vOi, vP)
    stamp(g, 4)
    sO = S.alloc()
    for k in range(16):
        if k % 4 == 0: e(f"s_mov_b32 s{sO}, {k*1024}")
        a.vmem(f"buffer_load_dwordx4 {vr(OF+4*k,4)}, v{vOl}, {ws}, s{sO} offen offset:{(k%4)*1024} sc1", ("of", k))
    S.release(sO)
    rd(0)
    for k in range(16):
        if k + 1 < 16: rd(k + 1)
        a.wait_lg(("wf", k)); a.wait_vm(("of", k))
        for mt in range(4):
            C = xi + 4*mt if k == 0 else acc + 4*mt
            e(f"v_mfma_f32_16x16x32_bf16 {vr(acc+4*mt,4)}, {vr(AF[k%NB]+4*mt,4)}, {vr(OF+4*k,4)}, {vr(C,4)}")
        if k == 1: e(f"v_max_u32 v{vMx}, v{OF}, v{OF+4}")
        elif k & 1: e(f"v_max3_u32 v{vMx}, v{vMx}, v{OF+4*k-4}, v{OF+4*k}")
    e(f"v_cmp_eq_u32 vcc, -1, v{vMx}")
    spin_tail(g, s, lab)
    stamp(g, 5)
    V.release(OF, 64); V.release(xi, 16); V.release(vMx)
    for r in AF: V.release(r, 16)
    for r in vWa + [vOl, vOi]: V.release(r)
    sm = V.alloc(2); sq = V.alloc(2); st = V.alloc(2)
    e(f"v_pk_add_f32 {vr(sm,2)}, {vr(acc,2)}, {vr(acc+2,2)}")
    e(f"v_pk_mul_f32 {vr(sq,2)}, {vr(acc,2)}, {vr(acc,2)}")
    e(f"v_pk_fma_f32 {vr(sq,2)}, {vr(acc+2,2)}, {vr(acc+2,2)}, {vr(sq,2)}")
    for r in range(2, 8):
        e(f"v_pk_add_f32 {vr(sm,2)}, {vr(sm,2)}, {vr(acc+2*r,2)}")
        e(f"v_pk_fma_f32 {vr(sq,2)}, {vr(acc+2*r,2)}, {vr(acc+2*r,2)}, {vr(sq,2)}")
    e(f"v_add_f32 v{st}, v{sm}, v{sm+1}")
    e(f"v_add_f32 v{st+1}, v{sq}, v{sq+1}")
    allreduce2(g, st, st + 1, sm)
    e("s_mov_b64 exec, 0xffff")
    a.vmem(f"buffer_store_dwordx2 {vr(st,2)}, v{g.vSa}, {ws}, 0 offen sc1", "st")
    e("s_mov_b64 exec, -1")
    hp = V.alloc(8)
    for r in range(8): e(f"v_cvt_pk_bf16_f32 v{hp+r}, v{acc+2*r}, v{acc+2*r+1}")
    e(f"v_lshrrev_b32 v{vT0}, 1, v{vG}")
    e(f"v_bfe_u32 v{vT1}, v{g.vSl}, 1, 3")
    e(f"v_xor_b32 v{vT0}, v{vT0}, v{vT1}")
    e(f"v_lshlrev_b32 v{vT0}, 4, v{vT0}")
    e(f"v_lshl_add_u32 v{vT0}, v{g.vSl}, 7, v{vT0}")
    e(f"v_and_b32 v{vT1}, 1, v{vG}")
    e(f"v_lshl_add_u32 v{vT0}, v{vT1}, 3, v{vT0}")
    for mt in range(4):
        if mt: e(f"v_xor_b32 v{vT1}, {32*mt}, v{vT0}")
        a.ds(f"ds_write_b64 v{vT1 if mt else vT0}, {vr(hp+2*mt,2)} offset:{L_H}", "hw")
    if hasattr(g, "bg_a"): g.bg_a()
    sB = S.alloc()
    e(f"s_lshl_b32 s{sB}, s{g.sW}, 11")
    e(f"s_add_u32 s{sB}, s{sB}, 2048")
    vTw = V.alloc()
    e(f"v_bfe_u32 v{vT0}, v{vN}, 1, 1")
    e(f"v_lshlrev_b32 v{vT0}, 6, v{vT0}")
    e(f"v_lshl_add_u32 v{vT0}, v{vG}, 3, v{vT0}")
    e(f"v_lshl_add_u32 v{vT0}, v{vN}, 7, v{vT0}")
    e(f"v_add_u32 v{vTw}, s{sB}, v{vT0}")
    vTw2 = V.alloc()
    e(f"v_xor_b32 v{vTw2}, 64, v{vTw}")
    TA = tr_addr32(g, sB, None)
    S.release(sB)
    vSl = V.alloc(); pp = V.alloc(4)
    e(f"v_lshlrev_b32 v{vT0}, 6, v{vN}")
    e(f"v_lshl_add_u32 v{vT0}, v{vG}, 4, v{vT0}")
    e(f"v_add_u32 v{vSl}, s{g.sStb}, v{vT0}")
    s, lab = spin_head(g, "st")
    a.vmem(f"buffer_load_dwordx4 {vr(pp,4)}, v{vSl}, {ws}, 0 offen sc1", "sp")
    a.wait_vm()
    e(f"v_max_u32 v{vT0}, v{pp+1}, v{pp+3}")
    e(f"v_cmp_eq_u32 vcc, -1, v{vT0}")
    spin_tail(g, s, lab)
    stamp(g, 6)
    e(f"v_pk_add_f32 {vr(st,2)}, {vr(pp,2)}, {vr(pp+2,2)}")
    allreduce2(g, st, st + 1, sm)
    sInv = S.alloc(); sEps = S.alloc()
    e(f"s_mov_b32 s{sInv}, 0x3b000000")
    e(f"s_mov_b32 s{sEps}, 0x3727c5ac")
    m, var, r1, t = st, st + 1, sm, sm + 1
    e(f"v_mul_f32 v{m}, s{sInv}, v{m}")
    e(f"v_mul_f32 v{var}, s{sInv}, v{var}")
    e(f"v_fma_f32 v{var}, -v{m}, v{m}, v{var}")
    e(f"v_max_f32 v{var}, 0, v{var}")
    e(f"v_add_f32 v{t}, s{sEps}, v{var}")
    e(f"v_rsq_f32 v{r1}, v{t}")
    e(f"v_mul_f32 v{t}, v{r1}, v{r1}")
    e(f"v_fma_f32 v{t}, v{t}, v{var}, s{sEps}")
    e(f"v_rsq_f32 v{t}, v{t}")
    e(f"v_mul_f32 v{sq+1}, v{r1}, v{t}")
    e(f"v_mul_f32 v{sq}, -v{m}, v{sq+1}")
    for r in range(8):
        e(f"v_pk_fma_f32 {vr(acc+2*r,2)}, {vr(acc+2*r,2)}, {vr(sq,2)}, {vr(sq,2)} op_sel:[0,1,0] op_sel_hi:[1,1,0]")
    a.wait_lg()
    for r in range(8): e(f"v_cvt_pk_bf16_f32 v{hp+r}, v{acc+2*r}, v{acc+2*r+1}")
    for mt in range(4):
        a.ds(f"ds_write_b64 v{vTw2 if mt >= 2 else vTw}, {vr(hp+2*mt,2)} offset:{32*(mt&1)}", "tw")
    a.wait_lg()
    for dh in range(2):
        for h in range(2):
            a.ds(f"ds_read_b64_tr_b16 {vr(acc+4*dh+2*h,2)}, v{TA[dh]} offset:{1024*h}", ("tr", dh))
    for dh in range(2):
        a.wait_lg(("tr", dh))
        a.vmem(f"buffer_store_dwordx4 {vr(acc+4*dh,4)}, v{g.vHa}, {ws}, 0 offen offset:{1024*dh} sc1", "hst")
    stamp(g, 7)
    for r, n in ((acc, 16), (hp, 8), (sm, 2), (sq, 2), (st, 2), (pp, 4), (vSl, 1), (vTw, 1), (vTw2, 1), (TA[0], 1), (TA[1], 1), (vP, 1), (g.vXr, 8)): V.release(r, n)
    S.release(sInv); S.release(sEps)

def gemm_splitk(g, name, nsteps, vB, vI, init0, a_is_stream, stamps):
    a, V, S = g.a, g.V, g.S; e = a.e
    ws = sr(g.sWS, 4)
    acc = V.alloc(64, 4); NB = 12
    F = V.alloc(8 * NB, 4); vMx = V.alloc(); vP = V.alloc()
    sO = S.alloc()
    s, lab = spin_head(g, name)
    poll(g, name + "p", vI, vP)
    stamp(g, stamps[0])
    def ld(t):
        if t % 2 == 0: e(f"s_mov_b32 s{sO}, {t*2048}")
        for b in range(2):
            a.vmem(f"buffer_load_dwordx4 {vr(F+8*(t%NB)+4*b,4)}, v{vB[b]}, {ws}, s{sO} offen offset:{(t%2)*2048} sc1", ("f", t))
    for t in range(min(NB - 1, nsteps)): ld(t)
    for t in range(nsteps):
        a.wait_vm(("f", t))
        f = F + 8*(t % NB)
        for i in range(4):
            if a_is_stream: A, B = vr(f + 4*(i >> 1), 4), ar((t*2 + (i & 1))*4, 4)
            else: A, B = ar((t*2 + (i >> 1))*4, 4), vr(f + 4*(i & 1), 4)
            C = vr(acc + 16*i, 16) if t else (vr(init0, 16) if i == 0 else "0")
            e(f"v_mfma_f32_32x32x16_bf16 {vr(acc+16*i,16)}, {A}, {B}, {C}")
            if i == 0:
                if t == 0: e(f"v_max_u32 v{vMx}, v{f}, v{f+4}")
                else: e(f"v_max3_u32 v{vMx}, v{vMx}, v{f}, v{f+4}")
            if i == 1 and t + NB - 1 < nsteps: ld(t + NB - 1)
    e(f"v_cmp_eq_u32 vcc, -1, v{vMx}")
    spin_tail(g, s, lab)
    stamp(g, stamps[1])
    S.release(sO); V.release(vMx); V.release(vP)
    vW = V.alloc(); vR = V.alloc()
    e(f"v_lshlrev_b32 v{vR}, 4, v{g.vL}")
    for i in range(1, 4):
        e(f"s_xor_b32 s{g.sT}, s{g.sW}, {i}")
        e(f"s_mul_i32 s{g.sT}, s{g.sT}, 12288")
        e(f"v_add_u32 v{vW}, s{g.sT}, v{vR}")
        for r in range(4):
            a.ds(f"ds_write_b128 v{vW}, {vr(acc+16*i+4*r,4)} offset:{L_RED + (i-1)*4096 + r*1024}", "rw")
    e(f"s_mul_i32 s{g.sT}, s{g.sW}, 12288")
    e(f"v_add_u32 v{vR}, s{g.sT}, v{vR}")
    a.wait_lg(); e("s_barrier")
    for i in range(3):
        for r in range(4):
            a.ds(f"ds_read_b128 {vr(F+16*i+4*r,4)}, v{vR} offset:{L_RED + i*4096 + r*1024}", ("rr", i))
    for i in range(3):
        a.wait_lg(("rr", i))
        for r in range(8):
            e(f"v_pk_add_f32 {vr(acc+2*r,2)}, {vr(acc+2*r,2)}, {vr(F+16*i+2*r,2)}")
    V.release(F, 8*NB); V.release(vW); V.release(vR); V.release(acc + 16, 48)
    return acc

def rest(g):
    a, V, S = g.a, g.V, g.S; e = a.e
    vT0, vT1, vT2, vT3 = g.vT; vL, vN, vG = g.vL, g.vN, g.vG
    ws = sr(g.sWS, 4)
    stop = g.opt.get("stop", 9)
    g.sStg = S.alloc()
    e(f"s_mul_i32 s{g.sStg}, s{g.sW}, 16384")
    e(f"s_add_u32 s{g.sStg}, s{g.sStg}, {L_STG}")
    phase2(g)
    if stop <= 2: return
    sX1 = S.alloc(); sX0 = S.alloc()
    e(f"s_lshr_b32 s{sX1}, s{g.sW}, 1")
    e(f"s_lshl_b32 s{sX1}, s{sX1}, 6")
    e(f"s_and_b32 s{sX0}, s{g.sW}, 1")
    e(f"s_lshl_b32 s{sX0}, s{sX0}, 6")
    e("s_barrier")
    e(f"s_cmp_ge_u32 s{g.sQh}, 7")
    e("s_cbranch_scc1 L_p4")
    vm_at_branch = list(a.vm)
    TA = tr_addr32(g, g.sStg, sX1)
    e(f"s_mul_i32 s{g.sT}, s{g.sW}, {512*3584}")
    e(f"s_lshl_b32 s{g.sT2}, s{g.sFt}, 7")
    e(f"s_add_u32 s{g.sT}, s{g.sT}, s{g.sT2}")
    vD = dma_voff(g, 2*3584, g.sT)
    batches = stage_weights(g, g.sW1, vD, lambda t, h: (256*(t >> 4) + 32*(t & 7) + 16*h + ((t >> 3) & 1))*3584, 32, TA, "w1")
    bq = V.alloc(8); init = V.alloc(16, 4)
    e(f"v_lshrrev_b32 v{vT0}, 5, v{vL}")
    e(f"s_add_u32 s{g.sT}, s{g.sT2}, s{sX1}")
    e(f"v_lshl_add_u32 v{vT0}, v{vT0}, 3, s{g.sT}")
    for k in range(4):
        a.vmem(f"global_load_dwordx2 {vr(bq+2*k,2)}, v{vT0}, {sr(g.sB1,2)} offset:{16*k}", "b1")
    for iss, dr in batches:
        iss(); dr()
    S.release(g.sStageTmp)
    for r in range(8):
        e(f"v_lshlrev_b32 v{init+2*r}, 16, v{bq+r}")
        e(f"v_and_b32 v{init+2*r+1}, 0xffff0000, v{bq+r}")
    V.release(vD); V.release(TA[0]); V.release(TA[1]); V.release(bq, 8)
    vB = [V.alloc(), V.alloc()]; vI = V.alloc()
    e(f"s_lshl_b32 s{g.sT}, s{g.sLo}, 2")
    e(f"s_add_u32 s{g.sT}, s{g.sT}, s{g.sW}")
    e(f"s_lshl_b32 s{g.sT}, s{g.sT}, 16")
    e(f"s_add_u32 s{g.sT}, s{g.sT}, {WS_HH}")
    e(f"v_lshl_add_u32 v{vI}, v{vL}, 10, s{g.sT}")
    e(f"s_lshl_b32 s{g.sT2}, s{sX0}, 4")
    e(f"s_add_u32 s{g.sT}, s{g.sT}, s{g.sT2}")
    e(f"v_lshl_add_u32 v{vB[0]}, v{vL}, 4, s{g.sT}")
    e(f"v_xor_b32 v{vB[1]}, 1024, v{vB[0]}")
    acc = gemm_splitk(g, "p3", 32, vB, vI, init, False, (8, 9))
    c0 = -2.0 * math.sqrt(2.0 / math.pi) * math.log2(math.e); c1 = c0 * 0.044715
    cc = V.alloc(2); t = init
    e(f"v_mov_b32 v{cc}, {f32bits(c0):#x}")
    e(f"v_mov_b32 v{cc+1}, {f32bits(c1):#x}")
    for r in range(8):
        e(f"v_pk_mul_f32 {vr(t+2*r,2)}, {vr(acc+2*r,2)}, {vr(acc+2*r,2)}")
    for r in range(8):
        e(f"v_pk_fma_f32 {vr(t+2*r,2)}, {vr(t+2*r,2)}, {vr(cc,2)}, {vr(cc,2)} op_sel:[0,1,0] op_sel_hi:[1,1,0]")
    for r in range(8):
        e(f"v_pk_mul_f32 {vr(t+2*r,2)}, {vr(t+2*r,2)}, {vr(acc+2*r,2)}")
    for r in range(16): e(f"v_exp_f32 v{t+r}, v{t+r}")
    for r in range(8):
        e(f"v_pk_add_f32 {vr(t+2*r,2)}, {vr(t+2*r,2)}, 1.0 op_sel_hi:[1,0]")
    for r in range(16): e(f"v_rcp_f32 v{t+r}, v{t+r}")
    for r in range(8):
        e(f"v_pk_mul_f32 {vr(t+2*r,2)}, {vr(t+2*r,2)}, {vr(acc+2*r,2)}")
    for r in range(8): e(f"v_cvt_pk_bf16_f32 v{acc+r}, v{t+2*r}, v{t+2*r+1}")
    for k in range(2):
        a.vmem(f"buffer_store_dwordx4 {vr(acc+4*k,4)}, v{g.vUa}, {ws}, 0 offen offset:{2048*k} sc1", "ust")
    V.release(acc, 16); V.release(init, 16); V.release(cc, 2)
    for r in vB + [vI]: V.release(r)
    e("s_nop 1")
    e("s_barrier")
    a.label("L_p4")
    a.vm = []
    stamp(g, 10)
    if stop <= 3: return
    TA = tr_addr32(g, g.sStg, sX0)
    e(f"s_mul_i32 s{g.sT}, s{g.sW}, {448*4096}")
    e(f"s_lshl_b32 s{g.sT2}, s{g.sHi}, 7")
    e(f"s_add_u32 s{g.sT}, s{g.sT}, s{g.sT2}")
    vD = dma_voff(g, 4096, g.sT)
    batches = stage_weights(g, g.sW2, vD, lambda t, h: (16*t + 8*h)*4096, 28, TA, "w2")
    hq = V.alloc(8); init = V.alloc(16, 4); vb = V.alloc(); vS = V.alloc()
    e(f"v_and_b32 v{vS}, 31, v{vL}")
    e(f"s_lshr_b32 s{g.sT}, s{sX0}, 1")
    e(f"v_add_u32 v{vS}, s{g.sT}, v{vS}")
    e(f"v_lshl_add_u32 v{vT0}, v{vS}, 1, s{g.sT2}")
    a.vmem(f"global_load_ushort v{vb}, v{vT0}, {sr(g.sB2,2)}", "b2")
    e(f"v_bfe_u32 v{vT0}, v{vS}, 1, 3")
    e(f"v_lshlrev_b32 v{vT0}, 4, v{vT0}")
    e(f"v_xor_b32 v{vT0}, s{sX1}, v{vT0}")
    e(f"v_lshl_add_u32 v{vT0}, v{vS}, 7, v{vT0}")
    e(f"v_lshrrev_b32 v{vT1}, 5, v{vL}")
    e(f"v_lshl_add_u32 v{vT0}, v{vT1}, 3, v{vT0}")
    for k in range(4):
        if k: e(f"v_xor_b32 v{vT1}, {16*k}, v{vT0}")
        a.ds(f"ds_read_b64 {vr(hq+2*k,2)}, v{vT1 if k else vT0} offset:{L_H}", "hr")
    for iss, dr in batches:
        iss(); dr()
    S.release(g.sStageTmp)
    e(f"v_lshlrev_b32 v{vb}, 16, v{vb}")
    for r in range(8):
        e(f"v_lshlrev_b32 v{init+2*r}, 16, v{hq+r}")
        e(f"v_and_b32 v{init+2*r+1}, 0xffff0000, v{hq+r}")
    for r in range(16): e(f"v_add_f32 v{init+r}, v{init+r}, v{vb}")
    V.release(vD); V.release(TA[0]); V.release(TA[1]); V.release(hq, 8); V.release(vb)
    vB = [V.alloc(), V.alloc()]; vI = V.alloc()
    e(f"s_lshl_b32 s{g.sT}, s{g.sLo}, 2")
    e(f"s_add_u32 s{g.sT}, s{g.sT}, s{g.sW}")
    e(f"s_mul_i32 s{g.sT}, s{g.sT}, {28*2048}")
    e(f"s_add_u32 s{g.sT}, s{g.sT}, {WS_UF}")
    e(f"v_min_u32 v{vT0}, 55, v{vL}")
    e(f"v_lshl_add_u32 v{vI}, v{vT0}, 10, s{g.sT}")
    e(f"s_lshl_b32 s{g.sT2}, s{sX1}, 4")
    e(f"s_add_u32 s{g.sT}, s{g.sT}, s{g.sT2}")
    e(f"v_lshl_add_u32 v{vB[0]}, v{vL}, 4, s{g.sT}")
    e(f"v_xor_b32 v{vB[1]}, 1024, v{vB[0]}")
    vO = V.alloc()
    e(f"s_lshl_b32 s{g.sT}, s{g.sHi}, 16")
    e(f"s_lshl_b32 s{g.sT2}, s{g.sLo}, 7")
    e(f"s_add_u32 s{g.sT}, s{g.sT}, s{g.sT2}")
    e(f"s_add_u32 s{g.sT}, s{g.sT}, s{sX1}")
    e(f"v_lshl_add_u32 v{vO}, v{vS}, 10, s{g.sT}")
    e(f"v_lshrrev_b32 v{vT1}, 5, v{vL}")
    e(f"v_lshl_add_u32 v{vO}, v{vT1}, 4, v{vO}")
    acc = gemm_splitk(g, "p4", 28, vB, vI, init, True, (1, 2))
    for r in range(8): e(f"v_cvt_pk_bf16_f32 v{init+r}, v{acc+2*r}, v{acc+2*r+1}")
    for k in range(2):
        o = init + 4*k
        e(f"v_permlane32_swap_b32 v{o}, v{o+2}")
        e(f"v_permlane32_swap_b32 v{o+1}, v{o+3}")
        a.vmem(f"buffer_store_dwordx4 {vr(o,4)}, v{vO}, {sr(g.sOUT,4)}, 0 offen offset:{32*k}", "out")
    stamp(g, 11)
```

```python
import sys, os
sys.path.insert(0, os.path.dirname(os.path.abspath(__file__)))
from asm import *

NAME = "sequential_preLN__sliding_local_dilated__mixer_token_mlp__prompt"
KN = NAME + "_kernel"

WS_OF = 0
WS_HH = 2 << 20
WS_UF = 4 << 20
WS_ST = 6 << 20
WS_TS = 7 << 20
WS_SIZE = 8 << 20

L_MISC = 0
L_XR = 24576
L_HL = 57344
L_WR = 65536
LDS_BYTES = 163840

class G:
    pass

def gen(opt):
    a = Asm(); V = Regs(256, 1); S = Regs(102, 3)
    g = G(); g.a = a; g.V = V; g.S = S; g.opt = opt
    e = a.e
    sX = S.alloc(4, 4); sWQ = S.alloc(4, 4); sWO = S.alloc(4, 4); sW1 = S.alloc(4, 4); sW2 = S.alloc(4, 4)
    sWS = S.alloc(4, 4); sOUT = S.alloc(4, 4); sDBG = S.alloc(4, 4)
    sB1 = S.alloc(2); sB2 = S.alloc(2); sPC = S.alloc(2)
    g.sX, g.sWQ, g.sWO, g.sW1, g.sW2, g.sWS, g.sOUT, g.sDBG, g.sB1, g.sB2 = sX, sWQ, sWO, sW1, sW2, sWS, sOUT, sDBG, sB1, sB2
    e(f"s_cmp_ge_u32 s2, 256")
    e(f"s_cbranch_scc1 L_end")
    e(f"s_load_dwordx2 {sr(sX,2)}, s[0:1], 0")
    e(f"s_load_dwordx2 {sr(sWQ,2)}, s[0:1], 8")
    e(f"s_load_dwordx2 {sr(sWS,2)}, s[0:1], 80")
    e(f"s_load_dwordx2 {sr(sWO,2)}, s[0:1], 16")
    e(f"s_load_dwordx2 {sr(sW1,2)}, s[0:1], 32")
    e(f"s_load_dwordx2 {sr(sW2,2)}, s[0:1], 48")
    e(f"s_load_dwordx2 {sr(sOUT,2)}, s[0:1], 64")
    e(f"s_load_dwordx2 {sr(sDBG,2)}, s[0:1], 72")
    e(f"s_load_dwordx2 {sr(sB1,2)}, s[0:1], 40")
    e(f"s_load_dwordx2 {sr(sB2,2)}, s[0:1], 56")
    e(f"s_getpc_b64 {sr(sPC,2)}")
    a.label("L_pc")
    vT0 = V.alloc(); vT1 = V.alloc(); vT2 = V.alloc(); vT3 = V.alloc()
    g.vT = [vT0, vT1, vT2, vT3]
    vJ = V.alloc(); g.vJ = vJ
    e(f"v_lshlrev_b32 v{vT0}, 7, v0")
    e(f"v_min_u32 v{vT0}, L_end-L_pc, v{vT0}")
    a.vmem(f"global_load_dword v{vJ}, v{vT0}, {sr(sPC,2)}", "pf")
    vL = V.alloc(); vN = V.alloc(); vG = V.alloc()
    g.vL, g.vN, g.vG = vL, vN, vG
    sW = S.alloc(); sW1k = S.alloc(); g.sW, g.sW1k = sW, sW1k
    e(f"v_lshrrev_b32 v{vT1}, 6, v0")
    e(f"v_and_b32 v{vL}, 63, v0")
    e(f"v_readfirstlane_b32 s{sW}, v{vT1}")
    e(f"v_and_b32 v{vN}, 15, v0")
    e(f"v_bfe_u32 v{vG}, v0, 4, 2")
    for s_, n in ((sX, 2048*1024), (sWQ, 512*3072), (sWO, 512*1024), (sW1, 2048*3584), (sW2, 1792*4096), (sWS, WS_SIZE), (sOUT, 2048*1024), (sDBG, 256)):
        e(f"s_mov_b32 s{s_+2}, {n}")
        e(f"s_mov_b32 s{s_+3}, 0x20000")
    e(f"s_lshl_b32 s{sW1k}, s{sW}, 10")
    sHi = S.alloc(); sLo = S.alloc(); sXr = S.alloc(); sQh = S.alloc(); sT = S.alloc(); sT2 = S.alloc()
    g.sHi, g.sLo, g.sXr, g.sQh, g.sT, g.sT2 = sHi, sLo, sXr, sQh, sT, sT2
    e(f"s_bfe_u32 s{sXr}, s2, 0x20001")
    e(f"s_lshr_b32 s{sQh}, s2, 5")
    e(f"s_lshl_b32 s{sHi}, s{sXr}, 3")
    e(f"s_add_u32 s{sHi}, s{sHi}, s{sQh}")
    e(f"s_bfe_u32 s{sLo}, s2, 0x20003")
    e(f"s_and_b32 s{sT}, s2, 1")
    e(f"s_lshl_b32 s{sT}, s{sT}, 2")
    e(f"s_add_u32 s{sLo}, s{sLo}, s{sT}")
    if opt.get("stop", 9) > 1:
        import gen2
        gen2.hooks(g)
    phase1(g)
    if opt.get("stop", 9) > 1:
        gen2.rest(g)
    finish_ts(g)
    a.label("L_end")
    e("s_endpgm")
    hdr = f"; @launch grid=(256,1,1) block=(256,1,1) lds={LDS_BYTES}\n"
    out = hdr + f""".amdgcn_target "amdgcn-amd-amdhsa--gfx950"
.text
.globl {KN}
.p2align 8
.type {KN},@function
{KN}:
""" + a.text() + f""".section .rodata,"a"
.p2align 6
.amdhsa_kernel {KN}
  .amdhsa_next_free_vgpr 512
  .amdhsa_next_free_sgpr 102
  .amdhsa_accum_offset 256
  .amdhsa_group_segment_fixed_size 0
  .amdhsa_kernarg_size 88
  .amdhsa_user_sgpr_count 2
  .amdhsa_user_sgpr_kernarg_segment_ptr 1
  .amdhsa_system_sgpr_workgroup_id_x 1
.end_amdhsa_kernel
"""
    return out, g

def stamp1(g, idx):
    if g.opt.get('stop', 9) == 1: stamp(g, idx)

def stamp(g, idx):
    if not g.opt.get("ts"): return
    if not hasattr(g, "sTS"):
        g.sTS = g.S.alloc(12, 1); g.sTSt = g.S.alloc(2, 2)
        for i in range(12): g.a.e(f"s_mov_b32 s{g.sTS+i}, 0")
    g.a.e(f"s_memrealtime {sr(g.sTSt, 2)}" if g.opt.get("ts") == 2 else f"s_memtime {sr(g.sTSt, 2)}")
    g.a.lg.append("ts"); g.a.lg.append("ts")
    g.a.wait_lg()
    g.a.e(f"s_mov_b32 s{g.sTS+idx}, s{g.sTSt}")

def phase1(g):
    a, V, S = g.a, g.V, g.S; e = a.e
    vT0, vT1, vT2, vT3 = g.vT; vL, vN, vG = g.vL, g.vN, g.vG
    sW, sW1k, sHi, sLo, sT, sT2 = g.sW, g.sW1k, g.sHi, g.sLo, g.sT, g.sT2
    SC1 = " sc1"
    NT = " nt" if g.opt.get("nt") else ""
    sRow = S.alloc()
    e(f"s_lshr_b32 s{sRow}, s{sHi}, 2")
    e(f"s_lshl_b32 s{sRow}, s{sRow}, 8")
    e(f"s_and_b32 s{sT}, s{sHi}, 1")
    e(f"s_lshl_b32 s{sT}, s{sT}, 7")
    e(f"s_add_u32 s{sRow}, s{sRow}, s{sT}")
    e(f"s_bfe_u32 s{sT}, s{sHi}, 0x10001")
    e(f"s_add_u32 s{sRow}, s{sRow}, s{sT}")
    vXo = V.alloc(); vHo = V.alloc(); vWo = V.alloc()
    e(f"v_lshrrev_b32 v{vT0}, 3, v{vL}")
    e(f"v_and_b32 v{vT1}, 7, v{vL}")
    e(f"s_lshl_b32 s{sT}, s{sW}, 4")
    e(f"s_add_u32 s{sT}, s{sT}, s{sRow}")
    e(f"v_lshl_add_u32 v{vXo}, v{vT0}, 1, s{sT}")
    e(f"v_lshlrev_b32 v{vXo}, 10, v{vXo}")
    e(f"s_and_b32 s{sT2}, s{sW}, 1")
    e(f"s_lshl_b32 s{sT2}, s{sT2}, 2")
    e(f"v_xor_b32 v{vT2}, v{vT1}, v{vG}")
    e(f"v_xor_b32 v{vT3}, s{sT2}, v{vT2}")
    e(f"v_lshl_add_u32 v{vXo}, v{vT3}, 4, v{vXo}")
    e(f"s_sub_u32 s{sT}, s{sRow}, 16")
    e(f"v_lshl_add_u32 v{vHo}, v{vT0}, 1, s{sT}")
    e(f"v_max_i32 v{vHo}, 0, v{vHo}")
    e(f"v_lshlrev_b32 v{vHo}, 10, v{vHo}")
    e(f"v_xor_b32 v{vT3}, 4, v{vT2}")
    e(f"v_lshl_add_u32 v{vHo}, v{vT3}, 4, v{vHo}")
    e(f"s_lshl_b32 s{sT}, s{sW}, 7")
    e(f"v_add_u32 v{vHo}, s{sT}, v{vHo}")
    e(f"s_lshl_b32 s{sT}, s{sW}, 3")
    e(f"v_add_u32 v{vWo}, s{sT}, v{vT0}")
    e(f"v_mul_u32_u24 v{vWo}, 3072, v{vWo}")
    e(f"v_and_b32 v{vT3}, 2, v{vT0}")
    e(f"v_xor_b32 v{vT3}, v{vT3}, v{vT1}")
    e(f"v_xor_b32 v{vT3}, s{sT2}, v{vT3}")
    e(f"v_lshl_add_u32 v{vWo}, v{vT3}, 4, v{vWo}")
    e(f"s_lshl_b32 s{sT}, s{sLo}, 7")
    e(f"v_add_u32 v{vWo}, s{sT}, v{vWo}")
    s64k = S.alloc(); sWs = S.alloc()
    e(f"s_mov_b32 s{s64k}, 65536")
    e(f"s_mov_b32 s{sWs}, 0")
    a.lg = ["k"]; a.wait_lg()
    stamp(g, 0)

    def dma(m0lit, voff, srd, soff, imm, tag):
        e(f"s_add_u32 m0, s{sW1k}, {m0lit}")
        a.vmem(f"buffer_load_dwordx4 v{voff}, {sr(srd,4)}, {soff} offen offset:{imm}{NT} lds", tag)
    def dma_halo(i):
        dma(L_HL + 4096*i - 512*i, vHo, g.sX, "0", 512*i, ("c", 4*i))
    def dma_list(c):
        slot = c % 4; L = []
        for i in range(2):
            L.append(lambda i=i: dma(L_XR + slot*8192 + 4096*i - 128*c, vXo, g.sX, f"s{s64k}" if i else "0", 128*c, ("c", c)))
        for i in range(2):
            for t in range(3):
                def f(i=i, t=t):
                    dma(L_WR + slot*24576 + t*8192 + 4096*i - 1024*t, vWo, g.sWQ, f"s{sWs}", 1024*t, ("c", c))
                    if t == 2: e(f"s_add_u32 s{sWs}, s{sWs}, 98304")
                L.append(f)
        return L
    dma_halo(0)
    for c in range(4):
        for f in dma_list(c): f()
    dma_halo(1)
    stamp1(g, 4)
    if hasattr(g, "early"): g.early(g)

    XF = [[V.alloc(4) for t in range(5)] for b in range(2)]
    WF = [[V.alloc(4) for t in range(3)] for b in range(2)]
    acc = [[V.alloc(4) for t in range(5)] for ty in range(3)]
    ST = [V.alloc(4) for t in range(5)]
    vOne = V.alloc(4)
    vXa = [V.alloc(), V.alloc()]; vHa = [V.alloc(), V.alloc()]
    vWa = [[V.alloc(), V.alloc()], [V.alloc(), V.alloc()]]
    e(f"v_lshrrev_b32 v{vT0}, 1, v{vN}")
    e(f"v_xor_b32 v{vT0}, v{vT0}, v{vG}")
    e(f"v_xor_b32 v{vT0}, s{sT2}, v{vT0}")
    e(f"v_lshlrev_b32 v{vT0}, 4, v{vT0}")
    e(f"v_lshl_add_u32 v{vT0}, v{vN}, 7, v{vT0}")
    e(f"v_add_u32 v{vXa[0]}, {L_XR}, v{vT0}")
    e(f"v_xor_b32 v{vXa[1]}, 64, v{vXa[0]}")
    e(f"v_add_u32 v{vHa[0]}, {L_HL - 1024}, v{vT0}")
    e(f"v_xor_b32 v{vHa[1]}, 64, v{vHa[0]}")
    e(f"v_lshrrev_b32 v{vT0}, 2, v{vN}")
    e(f"v_lshl_add_u32 v{vT1}, v{vG}, 3, v{vT0}")
    e(f"v_lshlrev_b32 v{vT1}, 7, v{vT1}")
    e(f"v_and_b32 v{vT0}, 2, v{vT0}")
    e(f"v_and_b32 v{vT2}, 1, v{vG}")
    e(f"v_lshl_add_u32 v{vT0}, v{vT2}, 2, v{vT0}")
    e(f"v_bfe_u32 v{vT2}, v{vN}, 1, 1")
    e(f"s_lshl_b32 s{sT}, s{sW}, 1")
    e(f"v_add_u32 v{vT2}, s{sT}, v{vT2}")
    e(f"v_xor_b32 v{vT0}, v{vT0}, v{vT2}")
    e(f"v_lshl_add_u32 v{vT1}, v{vT0}, 4, v{vT1}")
    e(f"v_and_b32 v{vT0}, 1, v{vN}")
    e(f"v_lshl_add_u32 v{vT1}, v{vT0}, 3, v{vT1}")
    e(f"s_lshl_b32 s{sT}, s{sT2}, 10")
    e(f"s_add_u32 s{sT}, s{sT}, {L_WR}")
    e(f"v_add_u32 v{vWa[0][0]}, s{sT}, v{vT1}")
    e(f"v_xor_b32 v{vWa[0][1]}, 4096, v{vWa[0][0]}")
    e(f"v_add_u32 v{vWa[1][0]}, 49152, v{vWa[0][0]}")
    e(f"v_add_u32 v{vWa[1][1]}, 49152, v{vWa[0][1]}")
    for i in range(4):
        e(f"v_mov_b32 v{vOne+i}, 0x3f803f80")
        e(f"v_mov_b32 v{XF[0][0]+i}, 0x3f803f80")
        e(f"v_mov_b32 v{XF[1][0]+i}, 0x3f803f80")
    sHm = S.alloc(2)
    e(f"s_mov_b32 s{sHm}, 0xff00ff00")
    e(f"s_mov_b32 s{sHm+1}, 0xff00ff00")
    e(f"s_cmp_ge_u32 s{sW}, 2")
    e(f"s_cselect_b64 vcc, -1, 0")

    def reads(s):
        c = s >> 1; ab = s & 1; slot = c % 4; b = s & 1; L = []
        def t0():
            e(f"s_mov_b64 exec, {sr(sHm,2)}")
            a.ds(f"ds_read_b128 {vr(XF[b][0],4)}, v{vHa[ab]} offset:{1024*c}", ("r", s))
            e(f"s_mov_b64 exec, -1")
        for ty in range(3):
            for h in range(2):
                L.append(lambda ty=ty, h=h: a.ds(f"ds_read_b64_tr_b16 {vr(WF[b][ty]+2*h,2)}, v{vWa[slot>>1][ab]} offset:{(slot&1)*24576 + ty*8192 + h*512}", ("r", s)))
        L.append(t0)
        for t in range(1, 5):
            L.append(lambda t=t: a.ds(f"ds_read_b128 {vr(XF[b][t],4)}, v{vXa[ab]} offset:{slot*8192 + (t-1)*2048}", ("r", s)))
        return L
    nlab = [0]
    def mfmas(s):
        b = s & 1; L = []
        def C(r): return "0" if s == 0 else vr(r, 4)
        if (s & 1) == 0:
            def stats():
                nlab[0] += 1; k = nlab[0]
                e(f"s_cbranch_vccnz L_sq{k}")
                for t in range(5): e(f"v_mfma_f32_16x16x32_bf16 {vr(ST[t],4)}, {vr(vOne,4)}, {vr(XF[b][t],4)}, {C(ST[t])}")
                e(f"s_branch L_sd{k}")
                a.label(f"L_sq{k}")
                for t in range(5): e(f"v_mfma_f32_16x16x32_bf16 {vr(ST[t],4)}, {vr(XF[b][t],4)}, {vr(XF[b][t],4)}, {C(ST[t])}")
                a.label(f"L_sd{k}")
            L.append(stats)
        for t in range(5):
            for ty in range(3):
                A, B = (WF[b][ty], XF[b][t]) if ty < 2 else (XF[b][t], WF[b][ty])
                L.append(lambda A=A, B=B, r=acc[ty][t]: e(f"v_mfma_f32_16x16x32_bf16 {vr(r,4)}, {vr(A,4)}, {vr(B,4)}, {C(r)}"))
        return L
    def interleave(M, F):
        F = list(F)
        for m in M:
            m()
            if F: F.pop(0)()
        for f in F: f()

    sM = [S.alloc(2, 2) for _ in range(3)]
    e(f"v_and_b32 v{vT0}, 3, v{vN}")
    for i in range(3): e(f"v_cmp_eq_u32 {sr(sM[i],2)}, {i+1}, v{vT0}")
    sLe = [S.alloc(2, 2) for _ in range(4)]
    vBias = V.alloc(4); vBias1 = V.alloc(4); vMc = V.alloc(2); vMp = V.alloc(2)
    e(f"v_lshlrev_b32 v{vT0}, 2, v{vG}")
    e(f"v_sub_u32 v{vT0}, v{vN}, v{vT0}")
    sNeg = S.alloc(); sB = S.alloc(); sTm = S.alloc(2, 2)
    e(f"s_mov_b32 s{sNeg}, 0xf149f2ca")
    e(f"v_mov_b32 v{vT3}, s{sNeg}")
    e(f"s_cmp_lt_u32 s{sRow}, 16")
    e(f"s_cselect_b32 s{sB}, s{sNeg}, 0")
    for i in range(4):
        e(f"v_cmp_le_i32 {sr(sLe[i],2)}, {i}, v{vT0}")
        e(f"v_subrev_u32 v{vT1}, {i}, v{vT0}")
        e(f"v_and_b32 v{vT1}, 8, v{vT1}")
        e(f"v_cmp_eq_u32 {sr(sTm,2)}, 0, v{vT1}")
        e(f"v_cndmask_b32 v{vBias+i}, v{vT3}, 0, {sr(sTm,2)}")
        e(f"v_min_f32 v{vBias1+i}, s{sB}, v{vBias+i}")
    e(f"v_mov_b32 v{vT1}, 0xffff")
    e(f"v_mov_b32 v{vT2}, 0xffff0000")
    for p in range(2):
        e(f"v_cndmask_b32 v{vT0}, 0, v{vT1}, {sr(sLe[2*p],2)}")
        e(f"v_cndmask_b32 v{vT3}, 0, v{vT2}, {sr(sLe[2*p+1],2)}")
        e(f"v_or_b32 v{vMc+p}, v{vT0}, v{vT3}")
        e(f"v_not_b32 v{vMp+p}, v{vMc+p}")
    P_OFF = L_MISC
    N_OFF = L_MISC + 2048
    vPw = V.alloc(); vPr = V.alloc(); vPr2 = V.alloc(); vNw = V.alloc(); vNw2 = V.alloc(); vNl = V.alloc(); vNr = V.alloc()
    e(f"s_lshl_b32 s{sT}, s{sW}, 2")
    e(f"v_lshl_add_u32 v{vPw}, v{vN}, 4, s{sT}")
    e(f"v_lshlrev_b32 v{vPr}, 4, v{vL}")
    e(f"v_lshlrev_b32 v{vPr2}, 4, v{vN}")
    e(f"s_lshl_b32 s{sT}, s{sW}, 11")
    e(f"s_add_u32 s{sT}, s{sT}, {N_OFF}")
    e(f"v_lshl_add_u32 v{vNw}, v{vL}, 2, s{sT}")
    e(f"v_lshl_add_u32 v{vNw2}, v{vN}, 2, s{sT}")
    e(f"v_lshl_add_u32 v{vNl}, v{vN}, 3, s{sT}")
    e(f"v_lshl_add_u32 v{vNr}, v{vG}, 4, s{sT}")
    vNp = V.alloc()
    e(f"v_lshl_add_u32 v{vNp}, v{vL}, 3, s{sT}")
    if not hasattr(g, "oaddr_done"):
        g.vOa = V.alloc(); oaddr(g, g.vOa)
    vOa = g.vOa

    PRE = g.opt.get("pre", 10)
    stamp1(g, 5)
    a.wait_vm(("c", 0)); e("s_barrier")
    stamp1(g, 1)
    for f in reads(0): f()
    for s in range(16):
        M = mfmas(s)
        a.wait_lg(("r", s))
        if s == 15:
            break
        if s & 1:
            c1 = (s + 1) >> 1
            for m in M[:PRE]: m()
            a.wait_vm(("c", c1)); e("s_barrier")
            if c1 in (2, 4, 6, 7): stamp1(g, {2: 6, 4: 7, 6: 8, 7: 9}[c1])
            F = reads(s + 1)
            for f in F[:6]: f()
            D = dma_list(c1 + 3) if c1 + 3 < 8 else []
            interleave(M[PRE:], F[6:])
            for f in D: f()
            if c1 == 4 and hasattr(g, "flag"): g.flag(g)
        elif s < 14:
            interleave(M, reads(s + 1))
        else:
            M[0]()
            interleave(M[1:9], reads(15))
            Dg = [V.alloc() for _ in range(5)]
            def sel(t):
                e(f"v_cndmask_b32 v{Dg[t]}, v{ST[t]}, v{ST[t]+1}, {sr(sM[0],2)}")
                e(f"v_cndmask_b32 v{Dg[t]}, v{Dg[t]}, v{ST[t]+2}, {sr(sM[1],2)}")
                e(f"v_cndmask_b32 v{Dg[t]}, v{Dg[t]}, v{ST[t]+3}, {sr(sM[2],2)}")
            interleave(M[9:14], [lambda t=t: sel(t) for t in range(5)])
            e("s_mov_b32 exec_lo, 0x00f0000f"); e("s_mov_b32 exec_hi, 0xf0000f00")
            for t in range(5): a.ds(f"ds_write_b32 v{vPw}, v{Dg[t]} offset:{P_OFF + 256*t}", "pw")
            e("s_mov_b64 exec, -1")
            for m in M[14:]: m()
    stamp1(g, 2)
    a.wait_lg(); e("s_barrier")
    Pq = [V.alloc(4), V.alloc(4)]
    a.ds(f"ds_read_b128 {vr(Pq[0],4)}, v{vPr} offset:{P_OFF}", "pr")
    a.ds(f"ds_read_b128 {vr(Pq[1],4)}, v{vPr2} offset:{P_OFF+1024}", "pr")
    if hasattr(g, "post_loop"): g.post_loop(g)
    for m in M[:5]: m()
    a.wait_lg("pr")
    sInv = S.alloc(); sEps = S.alloc()
    e(f"s_mov_b32 s{sInv}, 0x3b000000")
    e(f"s_mov_b32 s{sEps}, 0x3727c5ac")
    def fin(p):
        q = Pq[p]
        return [
            lambda: (e(f"v_add_f32 v{q}, v{q}, v{q+1}"), e(f"v_add_f32 v{q+2}, v{q+2}, v{q+3}")),
            lambda: (e(f"v_mul_f32 v{q}, s{sInv}, v{q}"), e(f"v_mov_b32 v{q+3}, s{sEps}")),
            lambda: (e(f"v_fmac_f32 v{q+3}, s{sInv}, v{q+2}"), e(f"v_fma_f32 v{q+3}, -v{q}, v{q}, v{q+3}")),
            lambda: (e(f"v_max_f32 v{q+3}, s{sEps}, v{q+3}"), e(f"v_rsq_f32 v{q+1}, v{q+3}")),
            lambda: (e(f"v_mul_f32 v{q}, -v{q}, v{q+1}"),),
        ]
    F0, F1 = fin(0), fin(1)
    interleave(M[5:15], [f for pr in zip(F0, F1) for f in pr])
    a.ds(f"ds_write_b64 v{vNp}, {vr(Pq[0],2)}", "nw")
    a.ds(f"ds_write2_b32 v{vNw}, v{Pq[0]}, v{Pq[0]+1} offset0:160 offset1:240", "nw")
    a.ds(f"ds_write_b64 v{vNl}, {vr(Pq[1],2)} offset:512", "nw")
    e(f"v_add_u32 v{vNw2}, 256, v{vNw2}")
    a.ds(f"ds_write2_b32 v{vNw2}, v{Pq[1]}, v{Pq[1]+1} offset0:160 offset1:240", "nw")
    a.wait_lg()
    for b in range(2):
        for t in range(5): V.release(XF[b][t], 4)
        for t in range(3): V.release(WF[b][t], 4)
    for t in range(5): V.release(ST[t], 4); V.release(Dg[t])
    for q in Pq: V.release(q, 4)
    for r in vXa + vHa + vWa[0] + vWa[1] + [vXo, vHo, vWo, vPw, vPr, vPr2, vNw, vNw2, vNp]: V.release(r)
    NL = [V.alloc(2) for t in range(5)]
    NMr = [V.alloc(4) for t in range(5)]; Rr = [V.alloc(4) for t in range(5)]
    for t in range(5): a.ds(f"ds_read_b64 {vr(NL[t],2)}, v{vNl} offset:{128*t}", ("nl", t))
    for t in range(5):
        a.ds(f"ds_read_b128 {vr(NMr[t],4)}, v{vNr} offset:{640+64*t}", ("nr", t))
        a.ds(f"ds_read_b128 {vr(Rr[t],4)}, v{vNr} offset:{960+64*t}", ("nr", t))
    cs = [V.alloc(4), V.alloc(4)]; csV = V.alloc(2)
    for ty in range(2):
        for i in range(4):
            e(f"v_mov_b32_dpp v{cs[ty]+i}, v{acc[ty][0]+i} row_newbcast:0 row_mask:0xf bank_mask:0xf")
    e(f"v_mov_b32 v{csV}, v{acc[2][0]}")
    e(f"v_mov_b32 v{csV+1}, v{acc[2][0]}")
    e(f"v_permlane32_swap_b32 v{csV}, v{csV+1}")
    tmp = V.alloc(4)
    Qp = V.alloc(8); Kp = V.alloc(10); Vp = V.alloc(10)
    def normT(ty, t, dst):
        r = acc[ty][t]; nl = NL[t]
        for h in range(2):
            e(f"v_pk_mul_f32 {vr(tmp+2*h,2)}, {vr(cs[ty]+2*h,2)}, {vr(nl,2)} op_sel:[0,0] op_sel_hi:[1,0]")
        for h in range(2):
            e(f"v_pk_fma_f32 {vr(r+2*h,2)}, {vr(r+2*h,2)}, {vr(nl,2)}, {vr(tmp+2*h,2)} op_sel:[0,1,0] op_sel_hi:[1,1,1]")
        for h in range(2):
            e(f"v_cvt_pk_bf16_f32 v{dst+h}, v{r+2*h}, v{r+2*h+1}")
    def normV(t):
        r = acc[2][t]
        for h in range(2):
            e(f"v_pk_mul_f32 {vr(tmp+2*h,2)}, {vr(NMr[t]+2*h,2)}, {vr(csV,2)} op_sel:[0,0] op_sel_hi:[1,0]")
        for h in range(2):
            e(f"v_pk_fma_f32 {vr(r+2*h,2)}, {vr(r+2*h,2)}, {vr(Rr[t]+2*h,2)}, {vr(tmp+2*h,2)}")
        for h in range(2):
            e(f"v_cvt_pk_bf16_f32 v{Vp+2*t+h}, v{r+2*h}, v{r+2*h+1}")
    Sc = [V.alloc(4) for t in range(4)]; Sp = [V.alloc(4) for t in range(4)]
    a.wait_lg(("nl", 0)); normT(1, 0, Kp)
    for t in range(1, 5):
        a.wait_lg(("nl", t))
        normT(1, t, Kp + 2*t); normT(0, t, Qp + 2*(t-1))
        if t > 1:
            u = t - 1
            e(f"v_mfma_f32_16x16x16_bf16 {vr(Sc[u-1],4)}, {vr(Kp+2*u,2)}, {vr(Qp+2*(u-1),2)}, {vr(vBias,4)}")
            e(f"v_mfma_f32_16x16x16_bf16 {vr(Sp[u-1],4)}, {vr(Kp+2*u-2,2)}, {vr(Qp+2*(u-1),2)}, {vr(vBias1 if u == 1 else vBias,4)}")
    a.wait_lg(("nr", 0)); normV(0)
    u = 4
    e(f"v_mfma_f32_16x16x16_bf16 {vr(Sc[u-1],4)}, {vr(Kp+2*u,2)}, {vr(Qp+2*(u-1),2)}, {vr(vBias,4)}")
    e(f"v_mfma_f32_16x16x16_bf16 {vr(Sp[u-1],4)}, {vr(Kp+2*u-2,2)}, {vr(Qp+2*(u-1),2)}, {vr(vBias,4)}")
    a.wait_lg(("nr", 2)); normV(1); normV(2)
    mx = [V.alloc() for t in range(4)]
    for t in range(4):
        for i in range(4):
            e(f"v_cndmask_b32 v{Sc[t]+i}, v{Sp[t]+i}, v{Sc[t]+i}, {sr(sLe[i],2)}")
        e(f"v_max3_f32 v{mx[t]}, v{Sc[t]}, v{Sc[t]+1}, v{Sc[t]+2}")
        e(f"v_max_f32 v{mx[t]}, v{mx[t]}, v{Sc[t]+3}")
    a.wait_lg()
    e(f"v_permlane32_swap_b32 v{mx[0]}, v{mx[1]}")
    e(f"v_permlane32_swap_b32 v{mx[2]}, v{mx[3]}")
    e(f"v_max_f32 v{mx[0]}, v{mx[0]}, v{mx[1]}")
    e(f"v_max_f32 v{mx[2]}, v{mx[2]}, v{mx[3]}")
    normV(3)
    e(f"v_permlane16_swap_b32 v{mx[0]}, v{mx[2]}")
    sC = S.alloc(); sNC = S.alloc()
    import struct, math
    cbits = struct.unpack("<I", struct.pack("<f", 0.25 * math.log2(math.e)))[0]
    e(f"s_mov_b32 s{sC}, {cbits:#x}")
    e(f"s_mov_b32 s{sNC}, {cbits | 0x80000000:#x}")
    e(f"v_max_f32 v{mx[0]}, v{mx[0]}, v{mx[2]}")
    e(f"v_mul_f32 v{mx[0]}, s{sNC}, v{mx[0]}")
    e(f"v_mov_b32 v{mx[2]}, v{mx[0]}")
    normV(4)
    e(f"v_permlane16_swap_b32 v{mx[0]}, v{mx[2]}")
    e(f"v_mov_b32 v{mx[1]}, v{mx[0]}")
    e(f"v_mov_b32 v{mx[3]}, v{mx[2]}")
    e(f"v_permlane32_swap_b32 v{mx[0]}, v{mx[1]}")
    e(f"v_permlane32_swap_b32 v{mx[2]}, v{mx[3]}")
    Pk = NL[:4]
    Ot = Sc; Ls = acc[0][1:5]
    for t in range(4):
        for i in range(4): e(f"v_fma_f32 v{Sc[t]+i}, v{Sc[t]+i}, s{sC}, v{mx[t]}")
        for i in range(4): e(f"v_exp_f32 v{Sc[t]+i}, v{Sc[t]+i}")
        for h in range(2): e(f"v_cvt_pk_bf16_f32 v{Pk[t]+h}, v{Sc[t]+2*h}, v{Sc[t]+2*h+1}")
        for h in range(2):
            e(f"v_and_b32 v{Sp[t]+h}, v{Pk[t]+h}, v{vMp+h}")
            e(f"v_and_b32 v{Sp[t]+2+h}, v{Pk[t]+h}, v{vMc+h}")
        e(f"v_mfma_f32_16x16x16_bf16 {vr(Ls[t],4)}, {vr(vOne,2)}, {vr(Pk[t],2)}, 0")
        e(f"v_mfma_f32_16x16x32_bf16 {vr(Ot[t],4)}, {vr(Vp+2*t,4)}, {vr(Sp[t],4)}, 0")
    Op = [acc[1][0], acc[1][1]]
    for t in range(4):
        e(f"v_rcp_f32 v{Ls[t]}, v{Ls[t]}")
        for h in range(2):
            e(f"v_pk_mul_f32 {vr(Ot[t]+2*h,2)}, {vr(Ot[t]+2*h,2)}, {vr(Ls[t],2)} op_sel:[0,0] op_sel_hi:[1,0]")
        for h in range(2):
            e(f"v_cvt_pk_bf16_f32 v{Op[t>>1]+2*(t&1)+h}, v{Ot[t]+2*h}, v{Ot[t]+2*h+1}")
        if t & 1:
            o = Op[t >> 1]
            e(f"v_permlane32_swap_b32 v{o}, v{o+2}")
            e(f"v_permlane32_swap_b32 v{o+1}, v{o+3}")
            so = "0" if t == 1 else f"s{g.sO2}"
            a.vmem(f"buffer_store_dwordx4 {vr(o,4)}, v{vOa}, {sr(g.sWS,4)}, {so} offen{SC1}", "ost")
    stamp(g, 3)
    keep = {0, *g.vT, g.vJ, vL, vN, vG} | set(getattr(g, "keepv", []))
    for i in range(256):
        V.free[i] = i not in keep
    for r in ([sRow, s64k, sWs, sNeg, sB, sInv, sEps, sC, sNC]): S.release(r)
    for r in sM + sLe + [sTm, sHm]: S.release(r, 2)

def oaddr(g, vOa):
    e = g.a.e; vT0 = g.vT[0]; sT, sT2 = g.sT, g.S.alloc()
    e(f"s_lshl_b32 s{sT}, s{g.sHi}, 16")
    e(f"s_lshl_b32 s{sT2}, s{g.sLo}, 11")
    e(f"s_add_u32 s{sT}, s{sT}, s{sT2}")
    e(f"s_lshl_b32 s{sT2}, s{g.sW}, 9")
    e(f"s_add_u32 s{sT}, s{sT}, s{sT2}")
    e(f"v_and_b32 v{vT0}, 31, v{g.vL}")
    e(f"v_lshl_add_u32 v{vOa}, v{vT0}, 4, s{sT}")
    e(f"v_lshrrev_b32 v{vT0}, 5, v{g.vL}")
    e(f"v_lshl_add_u32 v{vOa}, v{vT0}, 14, v{vOa}")
    g.sO2 = sT2
    e(f"s_mov_b32 s{sT2}, 32768")
    if WS_OF: e(f"v_add_u32 v{vOa}, {WS_OF}, v{vOa}")

def finish_ts(g):
    if not g.opt.get("ts"): return
    a = g.a; e = a.e; v = g.V.alloc(4); vA = g.V.alloc()
    e(f"s_lshl_b32 s{g.sT}, s2, 2")
    e(f"s_add_u32 s{g.sT}, s{g.sT}, s{g.sW}")
    e(f"s_lshl_b32 s{g.sT}, s{g.sT}, 6")
    e(f"s_add_u32 s{g.sT}, s{g.sT}, {WS_TS}")
    e(f"v_mov_b32 v{vA}, s{g.sT}")
    e("s_mov_b64 exec, 1")
    for q in range(3):
        for i in range(4): e(f"v_mov_b32 v{v+i}, s{g.sTS + (4*q+i)}")
        a.vmem(f"buffer_store_dwordx4 {vr(v,4)}, v{vA}, {sr(g.sWS,4)}, 0 offen offset:{16*q}", "ts")
    e("s_mov_b64 exec, -1")

if __name__ == "__main__":
    opt = {}
    out = None
    for x in sys.argv[1:]:
        k, v = x.split("=")
        if k == "out": out = v
        else: opt[k] = int(v)
    txt, g = gen(opt)
    out = out or f"cdna_kernels/{NAME}.s"
    open(out, "w").write(txt)
    print("wrote", out, "lines", txt.count("\n"), "nops", g.a.nnop, "vgpr hi", g.V.hi, "sgpr hi", g.S.hi)
```

```python
import re

TRANS = ("v_exp_f32", "v_log_f32", "v_rcp_f32", "v_rsq_f32", "v_sqrt_f32", "v_sin_f32", "v_cos_f32")

def parse_regs(tok):
    tok = tok.strip()
    tok = re.sub(r"^-", "", tok)
    m = re.match(r"^abs\((.*)\)$", tok)
    if m: tok = m.group(1)
    m = re.match(r"^\|(.*)\|$", tok)
    if m: tok = m.group(1)
    m = re.match(r"^([vas])(\d+)$", tok)
    if m: return [(m.group(1), int(m.group(2)))]
    m = re.match(r"^([vas])\[(\d+):(\d+)\]$", tok)
    if m: return [(m.group(1), i) for i in range(int(m.group(2)), int(m.group(3)) + 1)]
    if tok == "vcc": return [("s", 106), ("s", 107)]
    if tok == "vcc_lo": return [("s", 106)]
    if tok == "vcc_hi": return [("s", 107)]
    if tok == "m0": return [("s", 124)]
    if tok == "exec": return [("s", 126), ("s", 127)]
    if tok == "exec_lo": return [("s", 126)]
    if tok == "exec_hi": return [("s", 127)]
    return []

class Ins:
    __slots__ = ("text", "op", "kind", "w", "r", "c", "passes", "ws", "dpp", "wide_store", "lds_dma", "ab", "d")
    def __init__(self, text):
        self.text = text
        t = text.split(";")[0].strip()
        parts = t.split(None, 1)
        op = parts[0]
        self.op = op
        rest = parts[1] if len(parts) > 1 else ""
        ops = []; cur = ""; depth = 0
        for ch in rest:
            if ch == "[": depth += 1
            if ch == "]": depth -= 1
            if ch == "," and depth == 0: ops.append(cur); cur = ""
            else: cur += ch
        if cur.strip(): ops.append(cur)
        mods = ""
        if ops:
            last = ops[-1].strip().split(None, 1)
            ops[-1] = last[0]
            mods = last[1] if len(last) > 1 else ""
        ops = [o.strip() for o in ops]
        R = [parse_regs(o) for o in ops]
        self.w = set(); self.r = set(); self.c = set(); self.ab = set(); self.d = None
        self.passes = 0; self.ws = 1; self.dpp = ("row_" in mods or "quad_perm" in mods or "_dpp" in op)
        self.wide_store = False; self.lds_dma = False
        flat = lambda L: set(x for l in L for x in l)
        if op == "s_nop":
            self.kind = "nop"; self.ws = int(ops[0], 0) + 1
        elif op.startswith("v_mfma"):
            self.kind = "mfma"
            self.passes = 8 if "32x32" in op else 4
            self.w = flat(R[:1]); self.d = tuple(R[0]); self.ab = flat(R[1:3]); self.c = flat(R[3:4]); self.r = self.ab | self.c
        elif op.startswith("v_cmp"):
            self.kind = "valu"; self.w = flat(R[:1]); self.r = flat(R[1:])
        elif op.startswith("v_permlane"):
            self.kind = "valu"; self.w = flat(R[:2]); self.r = flat(R[:2])
        elif op.startswith("v_"):
            self.kind = "valu"; self.w = flat(R[:1]); self.r = flat(R[1:])
            if op.startswith(("v_fmac", "v_dot2c", "v_pk_fmac")) or self.dpp: self.r |= self.w
            if op.startswith(("v_add_co", "v_sub_co", "v_addc_co", "v_subb_co")): self.w |= flat(R[1:2]); self.r = flat(R[2:])
            if op.startswith("v_cndmask") and len(ops) == 3: self.r |= {("s", 106), ("s", 107)}
        elif op.startswith(("buffer_", "global_")):
            self.kind = "vmem"
            if "lds" in mods.split() or "_lds_" in op:
                self.lds_dma = True; self.r = flat(R) | {("s", 124)}
            elif "store" in op or "atomic" in op:
                self.r = flat(R)
                if "x3" in op or "x4" in op:
                    self.wide_store = True
                    self.c = flat(R[:1]) if op.startswith("buffer_") else flat(R[1:2])
            else:
                self.w = flat(R[:1]); self.r = flat(R[1:])
        elif op.startswith("ds_"):
            self.kind = "ds"
            if "read" in op or "permute" in op or "swizzle" in op:
                self.w = flat(R[:1]); self.r = flat(R[1:])
            else:
                self.r = flat(R)
        elif op.startswith("s_"):
            self.kind = "salu"
            if op.startswith(("s_cmp", "s_cbranch", "s_branch", "s_waitcnt", "s_barrier", "s_endpgm", "s_setprio", "s_sleep", "s_bitcmp")):
                self.r = flat(R)
            else:
                self.w = flat(R[:1]); self.r = flat(R[1:])
                if "saveexec" in op: self.w |= {("s", 126), ("s", 127)}
        else:
            raise ValueError("unknown instr " + text)

def need(p, c):
    n = 0
    pv = {x for x in p.w if x[0] in "va"}
    ps = {x for x in p.w if x[0] == "s"}
    if p.kind == "valu":
        if c.kind == "mfma" and pv & c.r: n = max(n, 2)
        if c.kind == "valu":
            if c.op.startswith("v_permlane") and pv & c.r: n = max(n, 2)
            if c.dpp and pv & c.r: n = max(n, 2)
            if c.op.startswith(("v_readfirstlane", "v_readlane")) and pv & c.r: n = max(n, 1)
            if p.op.startswith(TRANS) and pv & c.r: n = max(n, 1)
            if ps & c.r: n = max(n, 4 if c.op.startswith(("v_readlane", "v_writelane")) else 2)
            if p.op.startswith("v_dot") and pv & (c.r | c.w):
                n = max(n, 3)
        if c.kind in ("vmem",) and ps & c.r: n = max(n, 5)
        if c.kind in ("vmem", "ds", "mfma") and p.op.startswith(TRANS) and pv & c.r: n = max(n, 2)
        if c.kind == "salu" and ps & c.r: n = max(n, 1)
    if p.kind == "mfma":
        big = 12 if p.passes == 8 else 8
        ovl = 10 if p.passes == 8 else 6
        if c.kind == "mfma":
            if pv & c.ab: n = max(n, big)
            if pv & c.c:
                same = (c.passes == p.passes and set(p.d) == c.c and c.op == p.op)
                if not same: n = max(n, ovl)
            if pv & c.w and not (pv & c.c): n = max(n, ovl)
        elif c.kind in ("valu", "vmem", "ds"):
            if pv & (c.r | c.w): n = max(n, big)
            if c.kind == "valu" and (p.c & c.w): n = max(n, 7 if p.passes == 8 else 3)
            if c.kind != "valu" and (p.c & c.w): n = max(n, 7 if p.passes == 8 else 3)
    if p.kind == "salu":
        if ("s", 124) in p.w and c.lds_dma: n = max(n, 1)
    if p.kind == "vmem" and p.wide_store:
        if p.c & c.w: n = max(n, 2)
    return n

class Asm:
    def __init__(self):
        self.items = []
        self.vm = []
        self.lg = []
        self.nnop = 0
        self.bg = []
        self.cyc = 0; self.last_bg = 0; self.interval = 80; self.holds = 0; self.execfull = True; self.scc = False; self.tail = []
    def raw(self, s): self.items.append(s)
    def label(self, l): self.items.append(l + ":")
    def comment(self, s): self.items.append("  ; " + s)
    def e(self, text):
        for line in text.strip().split("\n"):
            line = line.strip()
            if not line: continue
            ins = Ins(line)
            dist = 0; req = 0
            for p in reversed(self.items):
                if isinstance(p, str): continue
                n = need(p, ins)
                if n - dist > req: req = n - dist
                dist += p.ws
                if dist >= 12: break
            if req > 0:
                self.items.append(Ins(f"s_nop {req-1}")); self.nnop += req; self.cyc += 4 * req
            self.items.append(ins)
            self.cyc += (ins.passes * 4 if ins.kind == "mfma" else 8 if ins.op.startswith(TRANS) else 4 * ins.ws)
            if ("s", 126) in ins.w or ("s", 127) in ins.w:
                self.execfull = line.split(";")[0].strip().endswith("exec, -1")
            if ins.op.startswith(("s_cmp", "s_bitcmp")): self.scc = True
            elif ins.op.startswith(("s_cselect", "s_cbranch_scc", "s_addc", "s_cmov")): self.scc = False
            if self.bg and not self.holds and self.execfull and not self.scc and ins.kind in ("mfma", "valu") and not ins.op.startswith("v_cmp") \
               and self.cyc - self.last_bg >= self.interval:
                self.run_bg(1)
    def run_bg(self, n=None):
        self.holds += 1
        while self.bg and (n is None or n > 0):
            f = self.bg.pop(0); f()
            if n is not None: n -= 1
        self.holds -= 1
        self.last_bg = self.cyc
    def hold(self): self.holds += 1
    def unhold(self): self.holds -= 1
    def vmem(self, text, tag=None):
        self.e(text); self.vm.append(tag)
        assert len(self.vm) <= 63, "vmcnt overflow"
    def ds(self, text, tag=None):
        self.e(text); self.lg.append(tag)
    def _cnt(self, lst, tags):
        if not isinstance(tags, (list, set)): tags = [tags]
        idx = -1
        for i, t in enumerate(lst):
            if t in tags: idx = i
        return idx
    def wait_vm(self, tags=None):
        if tags is None:
            self.e("s_waitcnt vmcnt(0)"); self.vm = []; return
        idx = self._cnt(self.vm, tags)
        if idx < 0: return
        n = len(self.vm) - 1 - idx
        self.e(f"s_waitcnt vmcnt({n})"); self.vm = self.vm[idx + 1:]
    def wait_lg(self, tags=None):
        if tags is None:
            self.e("s_waitcnt lgkmcnt(0)"); self.lg = []; return
        idx = self._cnt(self.lg, tags)
        if idx < 0: return
        n = len(self.lg) - 1 - idx
        if n > 15: n = 15; idx = len(self.lg) - 1 - n
        self.e(f"s_waitcnt lgkmcnt({n})"); self.lg = self.lg[idx + 1:]
    def text(self):
        out = []
        for it in self.items:
            out.append(it if isinstance(it, str) else "  " + it.text)
        return "\n".join(out) + "\n"

class Regs:
    def __init__(self, n, start=0):
        self.free = [True] * n
        for i in range(start): self.free[i] = False
        self.hi = start
    def alloc(self, n=1, align=None):
        if align is None: align = 1 if n == 1 else 2
        i = 0
        while True:
            if i + n > len(self.free): raise RuntimeError("out of regs")
            if all(self.free[i:i + n]): break
            i += align
        for k in range(i, i + n): self.free[k] = False
        self.hi = max(self.hi, i + n)
        return i
    def release(self, i, n=1):
        for k in range(i, i + n):
            assert not self.free[k]; self.free[k] = True

def vr(i, n=1, p="v"):
    return f"{p}{i}" if n == 1 else f"{p}[{i}:{i+n-1}]"
def ar(i, n=1): return vr(i, n, "a")
def sr(i, n=1): return vr(i, n, "s")
```

```python
import sys, os, struct, math
sys.path.insert(0, os.path.dirname(os.path.abspath(__file__)))
from asm import *

NAME = "sequential_preLN__sliding_local_dilated__mixer_token_mlp__prompt"
KN = NAME + "_kernel"

WS_OF = 0
WS_HH = 2 << 20
WS_UF = 4 << 20
WS_ST = 6 << 20
WS_FL = (6 << 20) + (512 << 10)
WS_EP = WS_FL + 4096
WS_TS = 7 << 20
WS_SIZE = 8 << 20

L_H = 0
L_TR = 8192
def SL(i): return 16384 + 8192 * i
L_XR = SL(1)
L_HL = SL(5)
L_WR = SL(6)
L_WO = SL(6)
L_RED = SL(6)
LDS_BYTES = 163840
SPIN = 30000

def f32bits(x): return struct.unpack("<I", struct.pack("<f", x))[0]

class G:
    pass

def newlabel(g, p):
    g.nl += 1
    return f"L_{p}{g.nl}"

def stamp(g, idx, force=False):
    if not g.opt.get("ts"): return
    if g.opt.get("tsl") and 4 <= idx <= 10 and not force: return
    a = g.a
    a.hold()
    if not hasattr(g, "sTS"):
        g.sTS = g.S.alloc(16, 1); g.sTSt = g.S.alloc(2, 2)
        for i in range(16): a.e(f"s_mov_b32 s{g.sTS+i}, 0")
    a.e(f"s_memrealtime {sr(g.sTSt, 2)}" if g.opt.get("ts") == 2 else f"s_memtime {sr(g.sTSt, 2)}")
    a.lg.append("ts"); a.lg.append("ts")
    a.wait_lg()
    a.e(f"s_mov_b32 s{g.sTS+idx}, s{g.sTSt}")
    a.unhold()

def finish_ts(g):
    if not g.opt.get("ts"): return
    a = g.a; e = a.e; v = g.V.alloc(4); vA = g.V.alloc()
    e(f"s_mov_b32 s{g.sTS+15}, s{g.sSpin}")
    e(f"s_lshl_b32 s{g.sT}, s2, 2")
    e(f"s_add_u32 s{g.sT}, s{g.sT}, s{g.sW}")
    e(f"s_lshl_b32 s{g.sT}, s{g.sT}, 6")
    e(f"s_add_u32 s{g.sT}, s{g.sT}, {WS_TS}")
    e(f"v_mov_b32 v{vA}, s{g.sT}")
    e("s_mov_b64 exec, 1")
    for q in range(4):
        for i in range(4): e(f"v_mov_b32 v{v+i}, s{g.sTS + (4*q+i)}")
        a.vmem(f"buffer_store_dwordx4 {vr(v,4)}, v{vA}, {sr(g.sWS,4)}, 0 offen offset:{16*q}", "ts")
    e("s_mov_b64 exec, -1")

class Stager:
    def __init__(self, g):
        self.g = g
        self.items = [("w1", t) for t in range(32)] + [("w2", t) for t in range(28)]
        self.nx = 0; self.half = 0; self.cur = None
        self.free = []; self.fl = []; self.nofree = set(); self.ndrained = 0
    def release(self, slots):
        self.free += [(s, None) for s in slots]
    def can_issue(self):
        return self.nx < len(self.items) and (self.half or self.free)
    def issue_half(self):
        g = self.g; a = g.a
        if not self.can_issue(): return
        it = self.items[self.nx]
        if self.half == 0:
            slot, tag = self.free.pop(0)
            if tag is not None: a.wait_lg(tag)
            self.cur = slot
        k, t = it; h = self.half
        if k == "w1": off = (256*(t >> 4) + 32*(t & 7) + 16*h + ((t >> 3) & 1))*3584
        else: off = (16*t + 8*h)*4096
        a.e(f"s_add_u32 m0, s{g.sW2k}, {SL(self.cur) + h*1024}")
        a.e(f"s_mov_b32 s{g.sSO}, {off}")
        a.vmem(f"buffer_load_dwordx4 v{g.vD[k]}, {sr(g.sW1 if k == 'w1' else g.sW2, 4)}, s{g.sSO} offen lds", it)
        if h: self.fl.append((it, self.cur)); self.nx += 1; self.half = 0
        else: self.half = 1
    def issue(self, n):
        for _ in range(2*n): self.issue_half()
    def drain_part(self, part):
        g = self.g; a = g.a
        it, slot = self.fl[0]
        k, t = it
        if part == 0: a.wait_vm(it)
        base = SL(slot); bi = base >> 16
        for h in range(2):
            a.ds(f"ds_read_b64_tr_b16 {ar((t*2+part)*4 + 2*h, 2)}, v{g.vTA[bi][part]} offset:{(base & 0xffff) + h*1024}", ("tr", it))
        if part == 1:
            self.fl.pop(0); self.ndrained += 1
            if slot not in self.nofree: self.free.append((slot, ("tr", it)))
    def drain(self, n=1):
        for _ in range(n): self.drain_part(0); self.drain_part(1)
    def bg_issue(self, n): self.g.a.bg += [self.issue_half] * (2*n)
    def bg_drain(self, n): self.g.a.bg += [self.drain] * n
    def bg_cycle(self, n):
        for _ in range(n): self.g.a.bg += [self.drain, self.issue_half, self.issue_half]
    def cycle(self, n, lag=2):
        for i in range(n):
            self.drain()
            if i >= lag: self.issue(1)
        self.issue(min(lag, n))

def spin_loop(g, name, body):
    a = g.a; e = a.e
    a.hold()
    lab = newlabel(g, name)
    a.label(lab)
    body()
    e(f"s_cbranch_vccz {lab}_ok")
    e(f"s_add_u32 s{g.sSpin}, s{g.sSpin}, 1")
    e(f"s_cmp_lt_u32 s{g.sSpin}, {SPIN}")
    e(f"s_cbranch_scc1 {lab}")
    a.label(lab + "_ok")
    a.unhold()

def verify(g, regs, vtmp, reload_lines):
    a = g.a; e = a.e
    a.hold()
    def chk(emit):
        d = [r + o for r in regs for o in (0, 3)]
        emit(f"v_max3_u32 v{vtmp}, v{d[0]}, v{d[1]}, v{d[2]}")
        emit(f"v_max_u32 v{vtmp}, v{vtmp}, v{d[3]}")
        emit(f"v_cmp_eq_u32 vcc, -1, v{vtmp}")
    assert len(regs) == 2
    chk(e)
    lab = newlabel(g, "sl")
    e(f"s_cbranch_vccnz {lab}")
    a.label(lab + "_b")
    a.unhold()
    T = [lab + ":"] + ["  " + x for x in reload_lines] + ["  s_waitcnt vmcnt(0)"]
    chk(lambda x: T.append("  " + x))
    T += [f"  s_cbranch_vccz {lab}_b", f"  s_add_u32 s{g.sSpin}, s{g.sSpin}, 1", f"  s_cmp_lt_u32 s{g.sSpin}, {SPIN}",
          f"  s_cbranch_scc1 {lab}", f"  s_branch {lab}_b"]
    a.tail += T

def store_sel(g, lines, tag):
    a = g.a; e = a.e
    if not g.opt.get("loc"):
        for x in lines: a.vmem(x + " sc1", tag)
        return
    a.hold()
    l1 = newlabel(g, "ss")
    e(f"s_cmp_eq_u32 s{g.sSame}, 0")
    e(f"s_cbranch_scc1 {l1}")
    for x in lines: e(x + " sc1")
    e(f"s_branch {l1}_e")
    a.label(l1)
    for x in lines: a.vmem(x, tag)
    a.label(l1 + "_e")
    a.unhold()

def gen(opt):
    a = Asm(); V = Regs(256, 1); S = Regs(102, 3)
    g = G(); g.a = a; g.V = V; g.S = S; g.opt = opt; g.nl = 0
    e = a.e
    sX = S.alloc(4, 4); sWQ = S.alloc(4, 4); sWO = S.alloc(4, 4); sW1 = S.alloc(4, 4); sW2 = S.alloc(4, 4)
    sWS = S.alloc(4, 4); sOUT = S.alloc(4, 4); sH3 = S.alloc(4, 4)
    sB1 = S.alloc(2); sB2 = S.alloc(2); sPC = S.alloc(2)
    g.sX, g.sWQ, g.sWO, g.sW1, g.sW2, g.sWS, g.sOUT, g.sH3, g.sB1, g.sB2 = sX, sWQ, sWO, sW1, sW2, sWS, sOUT, sH3, sB1, sB2
    e(f"s_cmp_ge_u32 s2, 256")
    e(f"s_cbranch_scc1 L_end")
    e(f"s_load_dwordx2 {sr(sX,2)}, s[0:1], 0")
    e(f"s_load_dwordx2 {sr(sWQ,2)}, s[0:1], 8")
    e(f"s_load_dwordx2 {sr(sWS,2)}, s[0:1], 80")
    e(f"s_load_dwordx2 {sr(sWO,2)}, s[0:1], 16")
    e(f"s_load_dwordx2 {sr(sW1,2)}, s[0:1], 32")
    e(f"s_load_dwordx2 {sr(sW2,2)}, s[0:1], 48")
    e(f"s_load_dwordx2 {sr(sOUT,2)}, s[0:1], 64")
    e(f"s_load_dwordx2 {sr(sH3,2)}, s[0:1], 80")
    e(f"s_load_dwordx2 {sr(sB1,2)}, s[0:1], 40")
    e(f"s_load_dwordx2 {sr(sB2,2)}, s[0:1], 56")
    e(f"s_getpc_b64 {sr(sPC,2)}")
    a.label("L_pc")
    vT0 = V.alloc(); vT1 = V.alloc(); vT2 = V.alloc(); vT3 = V.alloc()
    g.vT = [vT0, vT1, vT2, vT3]
    vJ = V.alloc(); g.vJ = vJ
    e(f"v_lshlrev_b32 v{vT0}, 7, v0")
    e(f"v_min_u32 v{vT1}, L_end-L_pc, v{vT0}")
    a.vmem(f"global_load_dword v{vJ}, v{vT1}, {sr(sPC,2)}", "pf")
    if opt.get("pf2", 1):
        e(f"v_add_u32 v{vT0}, 32768, v{vT0}")
        e(f"v_min_u32 v{vT1}, L_end-L_pc, v{vT0}")
        a.vmem(f"global_load_dword v{vJ}, v{vT1}, {sr(sPC,2)}", "pf")
    vL = V.alloc(); vN = V.alloc(); vG = V.alloc()
    g.vL, g.vN, g.vG = vL, vN, vG
    sW = S.alloc(); sW1k = S.alloc(); g.sW, g.sW1k = sW, sW1k
    e(f"v_lshrrev_b32 v{vT1}, 6, v0")
    e(f"v_and_b32 v{vL}, 63, v0")
    e(f"v_readfirstlane_b32 s{sW}, v{vT1}")
    e(f"v_and_b32 v{vN}, 15, v0")
    e(f"v_bfe_u32 v{vG}, v0, 4, 2")
    sHi = S.alloc(); sLo = S.alloc(); sD3 = S.alloc(); sFt = S.alloc(); sT = S.alloc(); sT2 = S.alloc()
    g.sHi, g.sLo, g.sD3, g.sFt, g.sT, g.sT2 = sHi, sLo, sD3, sFt, sT, sT2
    for s_, n in ((sX, 2048*1024), (sWQ, 512*3072), (sWO, 512*1024), (sW2, 1792*4096), (sWS, WS_SIZE), (sOUT, 2048*1024)):
        e(f"s_mov_b32 s{s_+2}, {n}")
        e(f"s_mov_b32 s{s_+3}, 0x20000")
    e(f"s_mov_b32 s{sW1+2}, {2048*3584}")
    e(f"s_cmp_lt_u32 s2, 224")
    e(f"s_cselect_b32 s{sH3+2}, {WS_SIZE}, 0")
    e(f"s_mov_b32 s{sW1+3}, 0x20000")
    e(f"s_mov_b32 s{sH3+3}, 0x20000")
    e(f"s_lshl_b32 s{sW1k}, s{sW}, 10")
    e(f"s_bfe_u32 s{sT}, s2, 0x20001")
    e(f"s_lshr_b32 s{sT2}, s2, 5")
    e(f"s_mul_i32 s{sFt}, s{sT}, 7")
    e(f"s_add_u32 s{sFt}, s{sFt}, s{sT2}")
    if opt.get("map", 1) == 0:
        e(f"s_lshl_b32 s{sHi}, s{sT}, 3")
        e(f"s_add_u32 s{sHi}, s{sHi}, s{sT2}")
    else:
        e(f"s_and_b32 s{sHi}, s2, 7")
        e(f"s_lshl_b32 s{sHi}, s{sHi}, 2")
        e(f"s_lshr_b32 s{sT2}, s2, 6")
        e(f"s_add_u32 s{sHi}, s{sHi}, s{sT2}")
    e(f"s_bfe_u32 s{sD3}, s2, 0x20003")
    e(f"s_and_b32 s{sT}, s2, 1")
    e(f"s_lshl_b32 s{sT}, s{sT}, 2")
    e(f"s_add_u32 s{sD3}, s{sD3}, s{sT}")
    if opt.get("map", 1) == 0: e(f"s_mov_b32 s{sLo}, s{sD3}")
    else: e(f"s_bfe_u32 s{sLo}, s2, 0x30003")
    g.sSpin = S.alloc(); e(f"s_mov_b32 s{g.sSpin}, 0")
    g.sW2k = S.alloc(); e(f"s_lshl_b32 s{g.sW2k}, s{sW}, 11")
    g.sSO = S.alloc(); g.sNon = S.alloc(); g.sSame = S.alloc()
    g.vOa = V.alloc(); g.vSa = V.alloc(); g.vHa = V.alloc(); g.vUa = V.alloc(); g.vSl = V.alloc()
    g.vXr = V.alloc(8); g.vFl = V.alloc(4)
    g.vD = {"w1": V.alloc(), "w2": V.alloc()}
    g.vTA = [[V.alloc(), V.alloc()] for _ in range(3)]
    g.keepv = [g.vOa, g.vSa, g.vHa, g.vUa, g.vSl, g.vD["w1"], g.vD["w2"]] + list(range(g.vXr, g.vXr + 8)) + [x for p in g.vTA for x in p]
    g.st = Stager(g)
    phase1(g)
    phase2(g)
    phase34(g)
    finish_ts(g)
    e("s_endpgm")
    for t in a.tail: a.raw(t)
    a.label("L_end")
    e("s_endpgm")
    hdr = f"; @launch grid=(256,1,1) block=(256,1,1) lds={LDS_BYTES}\n"
    out = hdr + f""".amdgcn_target "amdgcn-amd-amdhsa--gfx950"
.text
.globl {KN}
.p2align 8
.type {KN},@function
{KN}:
""" + a.text() + f""".section .rodata,"a"
.p2align 6
.amdhsa_kernel {KN}
  .amdhsa_next_free_vgpr 512
  .amdhsa_next_free_sgpr 102
  .amdhsa_accum_offset 256
  .amdhsa_group_segment_fixed_size 0
  .amdhsa_kernarg_size 88
  .amdhsa_user_sgpr_count 2
  .amdhsa_user_sgpr_kernarg_segment_ptr 1
  .amdhsa_system_sgpr_workgroup_id_x 1
.end_amdhsa_kernel
"""
    return out, g

def tr_base(g, v):
    e = g.a.e; vT1 = g.vT[1]
    e(f"v_lshrrev_b32 v{v}, 1, v{g.vG}")
    e(f"v_lshrrev_b32 v{vT1}, 2, v{g.vN}")
    e(f"v_lshl_add_u32 v{v}, v{v}, 2, v{vT1}")
    e(f"v_lshlrev_b32 v{v}, 7, v{v}")
    e(f"v_and_b32 v{vT1}, 1, v{g.vG}")
    e(f"v_lshl_add_u32 v{v}, v{vT1}, 5, v{v}")
    e(f"v_and_b32 v{vT1}, 3, v{g.vN}")
    e(f"v_lshl_add_u32 v{v}, v{vT1}, 3, v{v}")
    e(f"v_lshrrev_b32 v{vT1}, 3, v{g.vN}")
    e(f"v_lshl_add_u32 v{v}, v{vT1}, 6, v{v}")

def handoff_setup(g):
    a, V, S = g.a, g.V, g.S; e = a.e
    vT0, vT1, vT2, vT3 = g.vT; sT = g.sT
    sU = S.alloc()
    ws = sr(g.sWS, 4)
    vS = V.alloc(4); g.vSent = vS
    for i in range(4): e(f"v_mov_b32 v{vS+i}, -1")
    g.sO2 = S.alloc()
    e(f"s_lshl_b32 s{sT}, s{g.sHi}, 16")
    e(f"s_lshl_b32 s{sU}, s{g.sLo}, 11")
    e(f"s_add_u32 s{sT}, s{sT}, s{sU}")
    e(f"s_lshl_b32 s{sU}, s{g.sW}, 9")
    e(f"s_add_u32 s{sT}, s{sT}, s{sU}")
    e(f"s_mov_b32 s{g.sO2}, 32768")
    e(f"v_and_b32 v{vT0}, 31, v{g.vL}")
    e(f"v_lshl_add_u32 v{g.vOa}, v{vT0}, 4, s{sT}")
    e(f"v_lshrrev_b32 v{vT0}, 5, v{g.vL}")
    e(f"v_lshl_add_u32 v{g.vOa}, v{vT0}, 14, v{g.vOa}")
    e(f"s_lshl_b32 s{sT}, s{g.sHi}, 2")
    e(f"s_add_u32 s{sT}, s{sT}, s{g.sW}")
    e(f"s_lshl_b32 s{sT}, s{sT}, 10")
    g.sStb = S.alloc()
    e(f"s_add_u32 s{g.sStb}, s{sT}, {WS_ST}")
    e(f"s_lshl_b32 s{sU}, s{g.sLo}, 7")
    e(f"s_add_u32 s{sT}, s{g.sStb}, s{sU}")
    e(f"v_lshl_add_u32 v{g.vSa}, v{g.vN}, 3, s{sT}")
    g.sT2i = S.alloc()
    e(f"s_lshr_b32 s{g.sT2i}, s{g.sHi}, 2")
    e(f"s_lshl_b32 s{g.sT2i}, s{g.sT2i}, 4")
    e(f"s_lshr_b32 s{sT}, s{g.sW}, 1")
    e(f"s_lshl_b32 s{sT}, s{sT}, 3")
    e(f"s_add_u32 s{g.sT2i}, s{g.sT2i}, s{sT}")
    e(f"s_and_b32 s{sT}, s{g.sHi}, 3")
    e(f"s_lshl_b32 s{sT}, s{sT}, 1")
    e(f"s_add_u32 s{g.sT2i}, s{g.sT2i}, s{sT}")
    e(f"s_and_b32 s{sT}, s{g.sW}, 1")
    e(f"s_add_u32 s{g.sT2i}, s{g.sT2i}, s{sT}")
    e(f"s_lshl_b32 s{sT}, s{g.sLo}, 7")
    e(f"s_add_u32 s{sT}, s{sT}, s{g.sT2i}")
    e(f"s_lshl_b32 s{sT}, s{sT}, 11")
    e(f"s_add_u32 s{sT}, s{sT}, {WS_HH}")
    e(f"v_lshl_add_u32 v{g.vHa}, v{g.vL}, 4, s{sT}")
    e(f"s_mul_i32 s{sT}, s{g.sD3}, 28")
    e(f"s_add_u32 s{sT}, s{sT}, s{g.sFt}")
    e(f"s_lshl_b32 s{sT}, s{sT}, 13")
    e(f"s_lshr_b32 s{sU}, s{g.sW}, 1")
    e(f"s_lshl_b32 s{sU}, s{sU}, 12")
    e(f"s_add_u32 s{sT}, s{sT}, s{sU}")
    e(f"s_and_b32 s{sU}, s{g.sW}, 1")
    e(f"s_lshl_b32 s{sU}, s{sU}, 10")
    e(f"s_add_u32 s{sT}, s{sT}, s{sU}")
    e(f"s_add_u32 s{sT}, s{sT}, {WS_UF}")
    e(f"v_lshl_add_u32 v{g.vUa}, v{g.vL}, 4, s{sT}")
    LS = "" if g.opt.get("loc") else " sc1"
    def sts():
        e("s_mov_b64 exec, 0xffff")
        a.vmem(f"buffer_store_dwordx2 {vr(vS,2)}, v{g.vSa}, {ws}, 0 offen{LS}", ("sent", 0))
        e("s_mov_b64 exec, -1")
    h3 = sr(g.sH3, 4)
    g.sent = [
        lambda: a.vmem(f"buffer_store_dwordx4 {vr(vS,4)}, v{g.vOa}, {ws}, 0 offen{LS}", ("sent", 0)),
        lambda: a.vmem(f"buffer_store_dwordx4 {vr(vS,4)}, v{g.vOa}, {ws}, s{g.sO2} offen{LS}", ("sent", 0)),
        sts,
        lambda: a.vmem(f"buffer_store_dwordx4 {vr(vS,4)}, v{g.vHa}, {ws}, 0 offen sc1", ("sent", 1)),
        lambda: a.vmem(f"buffer_store_dwordx4 {vr(vS,4)}, v{g.vHa}, {ws}, 0 offen offset:1024 sc1", ("sent", 1)),
        lambda: a.vmem(f"buffer_store_dwordx4 {vr(vS,4)}, v{g.vUa}, {h3}, 0 offen sc1", ("sent", 1)),
        lambda: a.vmem(f"buffer_store_dwordx4 {vr(vS,4)}, v{g.vUa}, {h3}, 0 offen offset:2048 sc1", ("sent", 1)),
    ]
    if g.opt.get("nosent"): g.sent = g.sent[:g.opt["nosent"] - 1]
    e(f"v_and_b32 v{vT0}, 7, v{g.vL}")
    e(f"v_and_b32 v{vT1}, 1, v{g.vG}")
    e(f"v_lshlrev_b32 v{vT1}, 2, v{vT1}")
    e(f"v_xor_b32 v{vT0}, v{vT0}, v{vT1}")
    e(f"v_lshrrev_b32 v{vT1}, 3, v{g.vL}")
    e(f"s_mul_i32 s{sT}, s{g.sW}, {512*3584}")
    e(f"s_lshl_b32 s{sU}, s{g.sFt}, 7")
    e(f"s_add_u32 s{sT}, s{sT}, s{sU}")
    e(f"s_cmp_lt_u32 s2, 224")
    e(f"s_cselect_b32 s{sT}, s{sT}, 0x40000000")
    e(f"v_lshl_add_u32 v{vT2}, v{vT0}, 4, s{sT}")
    e(f"v_mad_u32_u24 v{g.vD['w1']}, v{vT1}, s{g.s7168}, v{vT2}")
    e(f"s_mul_i32 s{sT}, s{g.sW}, {448*4096}")
    e(f"s_lshl_b32 s{sU}, s{g.sHi}, 7")
    e(f"s_add_u32 s{sT}, s{sT}, s{sU}")
    e(f"v_lshl_add_u32 v{vT2}, v{vT0}, 4, s{sT}")
    e(f"v_lshl_add_u32 v{g.vD['w2']}, v{vT1}, 12, v{vT2}")
    tr_base(g, vT0)
    e(f"s_lshr_b32 s{sT}, s{g.sW}, 1")
    e(f"s_lshl_b32 s{sT}, s{sT}, 6")
    e(f"v_xor_b32 v{vT0}, s{sT}, v{vT0}")
    e(f"v_add_u32 v{g.vTA[0][0]}, s{g.sW2k}, v{vT0}")
    e(f"v_xor_b32 v{g.vTA[0][1]}, 64, v{g.vTA[0][0]}")
    for b in (1, 2):
        for p in range(2): e(f"v_add_u32 v{g.vTA[b][p]}, {65536*b}, v{g.vTA[0][p]}")
    S.release(sU)

def flag_store(g, which):
    a = g.a; e = a.e; vT0, vT1 = g.vT[:2]
    assert ("sent", which) not in a.vm
    a.hold()
    e(f"s_and_b32 s{g.sT}, s2, 7")
    e(f"s_lshl_b32 s{g.sT}, s{g.sT}, 7")
    e(f"s_lshr_b32 s{g.sT2}, s2, 3")
    e(f"s_lshl_b32 s{g.sT2}, s{g.sT2}, 2")
    e(f"s_add_u32 s{g.sT}, s{g.sT}, s{g.sT2}")
    e(f"s_lshl_b32 s{g.sT2}, s{g.sW}, 24")
    e(f"s_add_u32 s{g.sT}, s{g.sT}, s{g.sT2}")
    e(f"s_add_u32 s{g.sT}, s{g.sT}, {WS_FL + 1024*which}")
    e(f"v_mov_b32 v{vT0}, s{g.sT}")
    e(f"v_mov_b32 v{vT1}, s{g.sNon}")
    e("s_mov_b64 exec, 1")
    a.vmem(f"buffer_store_dword v{vT1}, v{vT0}, {sr(g.sWS,4)}, 0 offen sc1", "flag")
    e("s_mov_b64 exec, -1")
    a.unhold()

def flag_load(g, vFa, which=0):
    g.a.vmem(f"buffer_load_dwordx4 {vr(g.vFl,4)}, v{vFa}, {sr(g.sWS,4)}, 0 offen offset:{1024*which} sc1", "fl")

def flag_check(g, vFa, which=0):
    a = g.a; e = a.e; f = g.vFl; vT0, vT1 = g.vT[:2]
    a.hold()
    a.wait_vm("fl")
    def chk():
        for i in range(4): e(f"v_xor_b32 v{f+i}, s{g.sNon}, v{f+i}")
        e(f"v_or3_b32 v{vT0}, v{f}, v{f+1}, v{f+2}")
        e(f"v_or_b32 v{vT0}, v{vT0}, v{f+3}")
        e(f"v_cmp_lt_u32 vcc, 15, v{vT0}")
    chk()
    ok = newlabel(g, "flok")
    e(f"s_cbranch_vccz {ok}")
    saved = list(a.vm)
    def body():
        flag_load(g, vFa, which); a.wait_vm(); chk()
    spin_loop(g, "fl", body)
    a.vm = saved
    a.label(ok)
    if g.opt.get("loc") and which == 0:
        e(f"v_cmp_ne_u32 vcc, 0, v{vT0}")
        e(f"s_and_b32 s{g.sT}, s2, 7")
        e(f"s_lshl_b32 s{g.sT}, s{g.sT}, 3")
        e(f"s_lshr_b64 vcc, vcc, s{g.sT}")
        e(f"s_and_b32 s{g.sSame}, vcc_lo, 0xff")
        same = newlabel(g, "same")
        e(f"s_cbranch_scc0 {same}")
        saved = list(a.vm); ws = sr(g.sWS, 4)
        for i in range(4): e(f"v_mov_b32 v{f+i}, -1")
        a.vmem(f"buffer_store_dwordx4 {vr(f,4)}, v{g.vOa}, {ws}, 0 offen sc1", "x")
        a.vmem(f"buffer_store_dwordx4 {vr(f,4)}, v{g.vOa}, {ws}, s{g.sO2} offen sc1", "x")
        e("s_mov_b64 exec, 0xffff")
        a.vmem(f"buffer_store_dwordx2 {vr(f,2)}, v{g.vSa}, {ws}, 0 offen sc1", "x")
        e("s_mov_b64 exec, -1")
        a.wait_vm(); e("s_barrier")
        flag_store(g, 2)
        def body2():
            flag_load(g, vFa, 2); a.wait_vm(); chk()
            e(f"s_and_b32 s{g.sT}, s2, 7")
            e(f"s_lshl_b32 s{g.sT}, s{g.sT}, 3")
            e(f"s_lshr_b64 vcc, vcc, s{g.sT}")
            e(f"s_and_b64 vcc, vcc, 0xff")
            e("s_nop 4")
        spin_loop(g, "f2", body2)
        a.vm = saved
        a.label(same)
    a.unhold()

def phase1(g):
    a, V, S = g.a, g.V, g.S; e = a.e; st = g.st; opt = g.opt
    vT0, vT1, vT2, vT3 = g.vT; vL, vN, vG = g.vL, g.vN, g.vG
    sW, sW1k, sHi, sLo, sT, sT2 = g.sW, g.sW1k, g.sHi, g.sLo, g.sT, g.sT2
    sRow = S.alloc(); sP4 = S.alloc()
    e(f"s_lshr_b32 s{sRow}, s{sHi}, 2")
    e(f"s_lshl_b32 s{sRow}, s{sRow}, 8")
    e(f"s_and_b32 s{sT}, s{sHi}, 1")
    e(f"s_lshl_b32 s{sT}, s{sT}, 7")
    e(f"s_add_u32 s{sRow}, s{sRow}, s{sT}")
    e(f"s_bfe_u32 s{sT}, s{sHi}, 0x10001")
    e(f"s_add_u32 s{sRow}, s{sRow}, s{sT}")
    vXo = V.alloc(); vHo = V.alloc(); vWo = V.alloc()
    e(f"v_lshrrev_b32 v{vT0}, 3, v{vL}")
    e(f"v_and_b32 v{vT1}, 7, v{vL}")
    e(f"s_lshl_b32 s{sT}, s{sW}, 4")
    e(f"s_add_u32 s{sT}, s{sT}, s{sRow}")
    e(f"v_lshl_add_u32 v{vXo}, v{vT0}, 1, s{sT}")
    e(f"v_lshlrev_b32 v{vXo}, 10, v{vXo}")
    e(f"s_and_b32 s{sP4}, s{sW}, 1")
    e(f"s_lshl_b32 s{sP4}, s{sP4}, 2")
    e(f"v_xor_b32 v{vT2}, v{vT1}, v{vG}")
    e(f"v_xor_b32 v{vT3}, s{sP4}, v{vT2}")
    e(f"v_lshl_add_u32 v{vXo}, v{vT3}, 4, v{vXo}")
    e(f"s_sub_u32 s{sT}, s{sRow}, 16")
    e(f"v_lshl_add_u32 v{vHo}, v{vT0}, 1, s{sT}")
    e(f"v_max_i32 v{vHo}, 0, v{vHo}")
    e(f"v_lshlrev_b32 v{vHo}, 10, v{vHo}")
    e(f"v_xor_b32 v{vT3}, 4, v{vT2}")
    e(f"v_lshl_add_u32 v{vHo}, v{vT3}, 4, v{vHo}")
    e(f"s_lshl_b32 s{sT}, s{sW}, 7")
    e(f"v_add_u32 v{vHo}, s{sT}, v{vHo}")
    e(f"s_lshl_b32 s{sT}, s{sW}, 3")
    e(f"v_add_u32 v{vWo}, s{sT}, v{vT0}")
    e(f"v_mul_u32_u24 v{vWo}, 3072, v{vWo}")
    e(f"v_and_b32 v{vT3}, 2, v{vT0}")
    e(f"v_xor_b32 v{vT3}, v{vT3}, v{vT1}")
    e(f"v_xor_b32 v{vT3}, s{sP4}, v{vT3}")
    e(f"v_lshl_add_u32 v{vWo}, v{vT3}, 4, v{vWo}")
    e(f"s_lshl_b32 s{sT}, s{sLo}, 7")
    e(f"v_add_u32 v{vWo}, s{sT}, v{vWo}")
    s64k = S.alloc(); sWs = S.alloc(); g.s7168 = S.alloc(); sXc = S.alloc()
    e(f"s_mov_b32 s{s64k}, 65536")
    e(f"s_mov_b32 s{sWs}, 0")
    e(f"s_mov_b32 s{g.s7168}, 7168")
    e(f"s_mov_b32 s{g.sNon}, {WS_EP}")
    e(f"s_getreg_b32 s{sXc}, hwreg(HW_REG_XCC_ID, 0, 4)")
    sWi = S.alloc(); vPo = V.alloc(); vP1 = V.alloc(); vP2 = V.alloc()
    e(f"s_lshr_b32 s{sWi}, s2, 3")
    e(f"s_lshl_b32 s{sWi}, s{sWi}, 2")
    e(f"s_add_u32 s{sWi}, s{sWi}, s{sW}")
    vPq = V.alloc(); vPx = V.alloc()
    e(f"s_lshl_b32 s{sT}, s2, 2")
    e(f"s_add_u32 s{sT}, s{sT}, s{sW}")
    e(f"s_mul_i32 s{sT}, s{sT}, {9*128}")
    e(f"s_add_u32 s{sT}, s{sT}, {3072*128}")
    e(f"v_min_u32 v{vPq}, 8, v{vL}")
    e(f"v_lshl_add_u32 v{vPq}, v{vPq}, 7, s{sT}")
    e(f"s_lshl_b32 s{sT}, s{sWi}, 12")
    e(f"v_and_b32 v{vPo}, 31, v{vL}")
    e(f"v_lshl_add_u32 v{vPo}, v{vPo}, 7, s{sT}")
    e(f"s_and_b32 s{sT}, s2, 7")
    e(f"s_lshl_b32 s{sT}, s{sT}, 18")
    e(f"s_mul_i32 s{sT2}, s{sWi}, {17*128}")
    e(f"s_add_u32 s{sT}, s{sT}, s{sT2}")
    e(f"s_sub_u32 s{sT}, s{sT}, 16384")
    e(f"v_min_u32 v{vPx}, 16, v{vL}")
    e(f"v_lshl_add_u32 v{vPx}, v{vPx}, 7, s{sT}")
    a.lg = ["k"]; a.wait_lg()
    NTX = " nt" if opt.get("ntx", 1) else ""
    e(f"s_load_dword s{g.sNon}, {sr(g.sWS,2)}, s{g.sNon}")
    stamp(g, 0)

    issued = {}
    def dma(m0lit, voff, srd, soff, imm, tag):
        if opt.get("nodma"):
            issued[tag[1]] = issued.get(tag[1], 0) + 1; return
        e(f"s_add_u32 m0, s{sW1k}, {m0lit}")
        a.vmem(f"buffer_load_dwordx4 v{voff}, {sr(srd,4)}, {soff} offen offset:{imm}{NTX if srd == g.sX and opt.get('ntx', 1) > 1 else ''} lds", tag)
        issued[tag[1]] = issued.get(tag[1], 0) + 1
    def ensure(c):
        while c < 8 and issued.get(c, 0) < (9 if c % 4 == 0 else 8): a.run_bg(1)
    def dma_halo(i):
        dma(L_HL + 4096*i - 512*i, vHo, g.sX, "0", 512*i, ("c", 4*i))
    def dma_list(c):
        slot = c % 4; L = []
        for i in range(2):
            L.append(lambda i=i: dma(L_XR + slot*8192 + 4096*i - 128*c, vXo, g.sX, f"s{s64k}" if i else "0", 128*c, ("c", c)))
        for i in range(2):
            for t in range(3):
                def f(i=i, t=t):
                    dma(L_WR + slot*24576 + t*8192 + 4096*i - 1024*t, vWo, g.sWQ, f"s{sWs}", 1024*t, ("c", c))
                    if t == 2: e(f"s_add_u32 s{sWs}, s{sWs}, 98304")
                L.append(f)
        return L
    dma_halo(0)
    for f in dma_list(0): f()
    PRO = opt.get("pro", 2)
    for c in range(1, PRO): a.bg += dma_list(c)
    if opt.get("pfa", 1):
        a.bg += [lambda: a.vmem(f"buffer_load_dword v{g.vJ}, v{vPq}, {sr(g.sWQ,4)}, 0 offen", "pf"),
                 lambda: a.vmem(f"buffer_load_dword v{g.vJ}, v{vPx}, {sr(g.sX,4)}, 0 offen{NTX}", "pf")]
    a.interval = opt.get("iv0", 60); a.last_bg = a.cyc
    e(f"s_lshr_b32 s{sT}, s{sWi}, 5")
    e(f"s_lshl_b32 s{sT}, s{sT}, 9")
    e(f"s_and_b32 s{sT2}, s{sWi}, 31")
    e(f"s_lshl_b32 s{sT2}, s{sT2}, 3")
    e(f"s_add_u32 s{sT}, s{sT}, s{sT2}")
    e(f"v_add_u32 v{vP1}, s{sT}, v{vT0}")
    e(f"v_mul_u32_u24 v{vP1}, 3584, v{vP1}")
    e(f"v_min_u32 v{vT2}, 6, v{vT1}")
    e(f"v_lshl_add_u32 v{vP1}, v{vT2}, 7, v{vP1}")
    e(f"s_bfe_u32 s{sT}, s2, 0x20001")
    e(f"s_mul_i32 s{sT}, s{sT}, 896")
    e(f"v_add_u32 v{vP1}, s{sT}, v{vP1}")
    e(f"v_min_u32 v{vT2}, 55, v{vL}")
    e(f"v_lshrrev_b32 v{vT2}, 2, v{vT2}")
    e(f"s_mul_i32 s{sT}, s{sWi}, {14*4096}")
    e(f"s_and_b32 s{sT2}, s2, 7")
    e(f"s_lshl_b32 s{sT2}, s{sT2}, 9")
    e(f"s_add_u32 s{sT}, s{sT}, s{sT2}")
    e(f"v_lshl_add_u32 v{vP2}, v{vT2}, 12, s{sT}")
    e(f"v_and_b32 v{vT2}, 3, v{vL}")
    e(f"v_lshl_add_u32 v{vP2}, v{vT2}, 7, v{vP2}")
    e(f"s_mov_b32 s{sWi}, {256*3584}")
    NTW = " nt" if opt.get("ntw1", 0) else ""
    NTW2 = " nt" if opt.get("ntw2", 0) else ""
    PF = {
        "wo": lambda: a.vmem(f"buffer_load_dword v{g.vJ}, v{vPo}, {sr(g.sWO,4)}, 0 offen", "pf"),
        "w1a": lambda: a.vmem(f"buffer_load_dword v{g.vJ}, v{vP1}, {sr(g.sW1,4)}, 0 offen{NTW}", "pf"),
        "w1b": lambda: a.vmem(f"buffer_load_dword v{g.vJ}, v{vP1}, {sr(g.sW1,4)}, s{sWi} offen{NTW}", "pf"),
        "w2": lambda: a.vmem(f"buffer_load_dword v{g.vJ}, v{vP2}, {sr(g.sW2,4)}, 0 offen{NTW2}", "pf"),
    }
    if not opt.get("pfb", 1): PF = {k: (lambda: None) for k in PF}
    handoff_setup(g)

    XF = [[V.alloc(4) for t in range(5)] for b in range(2)]
    WF = [[V.alloc(4) for t in range(3)] for b in range(2)]
    acc = [[V.alloc(4) for t in range(5)] for ty in range(3)]
    ST = [V.alloc(4) for t in range(5)]
    vOne = V.alloc(4)
    vXa = [V.alloc(), V.alloc()]; vHa = [V.alloc(), V.alloc()]
    vWa = [[V.alloc(), V.alloc()], [V.alloc(), V.alloc()]]
    e(f"v_lshrrev_b32 v{vT0}, 1, v{vN}")
    e(f"v_xor_b32 v{vT0}, v{vT0}, v{vG}")
    e(f"v_xor_b32 v{vT0}, s{sP4}, v{vT0}")
    e(f"v_lshlrev_b32 v{vT0}, 4, v{vT0}")
    e(f"v_lshl_add_u32 v{vT0}, v{vN}, 7, v{vT0}")
    e(f"v_add_u32 v{vXa[0]}, {L_XR}, v{vT0}")
    e(f"v_xor_b32 v{vXa[1]}, 64, v{vXa[0]}")
    e(f"v_add_u32 v{vHa[0]}, {L_HL - 1024}, v{vT0}")
    e(f"v_xor_b32 v{vHa[1]}, 64, v{vHa[0]}")
    e(f"v_lshrrev_b32 v{vT0}, 2, v{vN}")
    e(f"v_lshl_add_u32 v{vT1}, v{vG}, 3, v{vT0}")
    e(f"v_lshlrev_b32 v{vT1}, 7, v{vT1}")
    e(f"v_and_b32 v{vT0}, 2, v{vT0}")
    e(f"v_and_b32 v{vT2}, 1, v{vG}")
    e(f"v_lshl_add_u32 v{vT0}, v{vT2}, 2, v{vT0}")
    e(f"v_bfe_u32 v{vT2}, v{vN}, 1, 1")
    e(f"s_lshl_b32 s{sT}, s{sW}, 1")
    e(f"v_add_u32 v{vT2}, s{sT}, v{vT2}")
    e(f"v_xor_b32 v{vT0}, v{vT0}, v{vT2}")
    e(f"v_lshl_add_u32 v{vT1}, v{vT0}, 4, v{vT1}")
    e(f"v_and_b32 v{vT0}, 1, v{vN}")
    e(f"v_lshl_add_u32 v{vT1}, v{vT0}, 3, v{vT1}")
    e(f"s_lshl_b32 s{sT}, s{sP4}, 10")
    e(f"s_add_u32 s{sT}, s{sT}, {L_WR}")
    e(f"v_add_u32 v{vWa[0][0]}, s{sT}, v{vT1}")
    e(f"v_xor_b32 v{vWa[0][1]}, 4096, v{vWa[0][0]}")
    e(f"v_add_u32 v{vWa[1][0]}, 49152, v{vWa[0][0]}")
    e(f"v_add_u32 v{vWa[1][1]}, 49152, v{vWa[0][1]}")
    for i in range(4):
        e(f"v_mov_b32 v{vOne+i}, 0x3f803f80")
        e(f"v_mov_b32 v{XF[0][0]+i}, 0x3f803f80")
        e(f"v_mov_b32 v{XF[1][0]+i}, 0x3f803f80")
    sHm = S.alloc(2)
    e(f"s_mov_b32 s{sHm}, 0xff00ff00")
    e(f"s_mov_b32 s{sHm+1}, 0xff00ff00")

    def reads(s):
        c = s >> 1; ab = s & 1; slot = c % 4; b = s & 1; L = []
        def t0():
            e(f"s_mov_b64 exec, {sr(sHm,2)}")
            a.ds(f"ds_read_b128 {vr(XF[b][0],4)}, v{vHa[ab]} offset:{1024*c}", ("r", s))
            e(f"s_mov_b64 exec, -1")
        for ty in range(3):
            for h in range(2):
                L.append(lambda ty=ty, h=h: a.ds(f"ds_read_b64_tr_b16 {vr(WF[b][ty]+2*h,2)}, v{vWa[slot>>1][ab]} offset:{(slot&1)*24576 + ty*8192 + h*512}", ("r", s)))
        L.append(t0)
        for t in range(1, 5):
            L.append(lambda t=t: a.ds(f"ds_read_b128 {vr(XF[b][t],4)}, v{vXa[ab]} offset:{slot*8192 + (t-1)*2048}", ("r", s)))
        return L
    def mfmas(s):
        b = s & 1; L = []
        def C(r): return "0" if s == 0 else vr(r, 4)
        if (s & 1) == 0:
            def stats():
                k = newlabel(g, "sq")
                a.hold()
                e(f"s_cbranch_vccnz {k}")
                for t in range(5): e(f"v_mfma_f32_16x16x32_bf16 {vr(ST[t],4)}, {vr(vOne,4)}, {vr(XF[b][t],4)}, {C(ST[t])}")
                e(f"s_branch {k}_d")
                a.label(k)
                for t in range(5): e(f"v_mfma_f32_16x16x32_bf16 {vr(ST[t],4)}, {vr(XF[b][t],4)}, {vr(XF[b][t],4)}, {C(ST[t])}")
                a.label(k + "_d")
                a.cyc -= 84
                a.unhold()
            L.append(stats)
        for t in range(5):
            for ty in range(3):
                A, B = (WF[b][ty], XF[b][t]) if ty < 2 else (XF[b][t], WF[b][ty])
                L.append(lambda A=A, B=B, r=acc[ty][t]: e(f"v_mfma_f32_16x16x32_bf16 {vr(r,4)}, {vr(A,4)}, {vr(B,4)}, {C(r)}"))
        return L
    def interleave(M, F):
        F = list(F)
        for m in M:
            m()
            if F: F.pop(0)()
        for f in F: f()

    sM = [S.alloc(2, 2) for _ in range(3)]
    e(f"v_and_b32 v{vT0}, 3, v{vN}")
    for i in range(3): e(f"v_cmp_eq_u32 {sr(sM[i],2)}, {i+1}, v{vT0}")
    sLe = [S.alloc(2, 2) for _ in range(4)]
    vBias = V.alloc(4); vBias1 = V.alloc(4); vMc = V.alloc(2); vMp = V.alloc(2)
    e(f"v_lshlrev_b32 v{vT0}, 2, v{vG}")
    e(f"v_sub_u32 v{vT0}, v{vN}, v{vT0}")
    sNeg = S.alloc(); sB = S.alloc()
    e(f"s_mov_b32 s{sNeg}, 0xf149f2ca")
    e(f"v_mov_b32 v{vT3}, s{sNeg}")
    e(f"s_cmp_lt_u32 s{sRow}, 16")
    e(f"s_cselect_b32 s{sB}, s{sNeg}, 0")
    for i in range(4):
        e(f"v_cmp_le_i32 {sr(sLe[i],2)}, {i}, v{vT0}")
        e(f"v_subrev_u32 v{vT1}, {i}, v{vT0}")
        e(f"v_and_b32 v{vT1}, 8, v{vT1}")
        e(f"v_cmp_eq_u32 vcc, 0, v{vT1}")
        e(f"v_cndmask_b32 v{vBias+i}, v{vT3}, 0, vcc")
        e(f"v_min_f32 v{vBias1+i}, s{sB}, v{vBias+i}")
    e(f"v_mov_b32 v{vT1}, 0xffff")
    e(f"v_mov_b32 v{vT2}, 0xffff0000")
    for p in range(2):
        e(f"v_cndmask_b32 v{vT0}, 0, v{vT1}, {sr(sLe[2*p],2)}")
        e(f"v_cndmask_b32 v{vT3}, 0, v{vT2}, {sr(sLe[2*p+1],2)}")
        e(f"v_or_b32 v{vMc+p}, v{vT0}, v{vT3}")
        e(f"v_not_b32 v{vMp+p}, v{vMc+p}")
    S.release(sNeg); S.release(sB)
    P_OFF = 0; N_OFF = 2048
    vPw = V.alloc(); vPr = V.alloc(); vPr2 = V.alloc(); vNw = V.alloc(); vNw2 = V.alloc(); vNl = V.alloc(); vNr = V.alloc(); vNp = V.alloc()
    e(f"s_lshl_b32 s{sT}, s{sW}, 2")
    e(f"v_lshl_add_u32 v{vPw}, v{vN}, 4, s{sT}")
    e(f"v_lshlrev_b32 v{vPr}, 4, v{vL}")
    e(f"v_lshlrev_b32 v{vPr2}, 4, v{vN}")
    e(f"s_add_u32 s{sT}, s{g.sW2k}, {N_OFF}")
    e(f"v_lshl_add_u32 v{vNw}, v{vL}, 2, s{sT}")
    e(f"v_lshl_add_u32 v{vNw2}, v{vN}, 2, s{sT}")
    e(f"v_add_u32 v{vNw2}, 256, v{vNw2}")
    e(f"v_lshl_add_u32 v{vNl}, v{vN}, 3, s{sT}")
    e(f"v_lshl_add_u32 v{vNr}, v{vG}, 4, s{sT}")
    e(f"v_lshl_add_u32 v{vNp}, v{vL}, 3, s{sT}")
    vOo = V.alloc(); sOo = S.alloc(); vFa = V.alloc(); vXro = V.alloc()
    e(f"v_lshrrev_b32 v{vT0}, 3, v{vL}")
    e(f"v_lshlrev_b32 v{vOo}, 10, v{vT0}")
    e(f"v_and_b32 v{vT0}, 7, v{vL}")
    e(f"v_lshlrev_b32 v{vT1}, 1, v{vG}")
    e(f"v_xor_b32 v{vT0}, v{vT0}, v{vT1}")
    e(f"v_lshl_add_u32 v{vOo}, v{vT0}, 4, v{vOo}")
    e(f"s_lshl_b32 s{sOo}, s{sW}, 13")
    e(f"s_lshl_b32 s{sT}, s{sLo}, 7")
    e(f"s_add_u32 s{sOo}, s{sOo}, s{sT}")
    e(f"v_add_u32 v{vFa}, {WS_FL}, v{vPr}")
    def wo_dma(i):
        def f():
            e(f"s_add_u32 m0, s{sW1k}, {L_WO + 4096*i}")
            a.vmem(f"buffer_load_dwordx4 v{vOo}, {sr(g.sWO,4)}, s{sOo} offen lds", "wo")
            if i < 15: e(f"s_add_u32 s{sOo}, s{sOo}, 32768")
        return f
    e(f"s_lshl_b32 s{sT}, s{sP4}, 3")
    e(f"s_lshr_b32 s{sT2}, s{sW}, 1")
    e(f"s_add_u32 s{sT}, s{sT}, s{sT2}")
    e(f"v_lshl_add_u32 v{g.vSl}, v{vN}, 1, s{sT}")
    e(f"s_lshl_b32 s{sT}, s{sHi}, 16")
    e(f"s_lshl_b32 s{sT2}, s{sLo}, 7")
    e(f"s_add_u32 s{sT}, s{sT}, s{sT2}")
    e(f"v_lshl_add_u32 v{vXro}, v{g.vSl}, 10, s{sT}")
    e(f"v_lshl_add_u32 v{vXro}, v{vG}, 3, v{vXro}")
    xr_loads = [lambda mt=mt: a.vmem(f"buffer_load_dwordx2 {vr(g.vXr+2*mt,2)}, v{vXro}, {sr(g.sX,4)}, 0 offen offset:{32*mt}", "xr") for mt in range(4)]
    a.run_bg()
    V.release(vPq); V.release(vPx)
    a.lg = ["k"]; a.wait_lg()
    e(f"s_lshr_b32 s{g.sNon}, s{g.sNon}, 4")
    e(f"s_mul_i32 s{g.sNon}, s{g.sNon}, 0x9e3779b1")
    e(f"s_add_u32 s{g.sNon}, s{g.sNon}, 0x7f4a7c15")
    e(f"s_lshl_b32 s{g.sNon}, s{g.sNon}, 4")
    e(f"s_or_b32 s{g.sNon}, s{g.sNon}, s{sXc}")
    S.release(sXc)
    e(f"s_cmp_ge_u32 s{sW}, 2")
    e(f"s_cselect_b64 vcc, -1, 0")

    PRE = opt.get("pre", 10)
    a.interval = opt.get("iv1", 60)
    st.release([0])
    SE = g.sent
    a.wait_vm(("c", 0)); e("s_barrier")
    stamp(g, 1)
    for f in reads(0): f()
    if PRO < 3: a.bg += dma_list(2)
    a.bg += SE[:3] + dma_list(3) + [lambda: dma_halo(1)]
    sched = {opt.get("t_wo", 4): [PF["wo"]]}
    for k, d in (("w1a", 4), ("w1b", 8), ("w2", 9)): sched.setdefault(opt.get("t_" + k, d), []).append(PF[k])
    g.sched = sched
    g.keepv += [vP1, vP2]
    a.bg += sched.get(0, [])
    for s in range(16):
        M = mfmas(s)
        a.wait_lg(("r", s))
        if s == 15:
            break
        if s & 1:
            c1 = (s + 1) >> 1
            for m in M[:PRE]: m()
            ensure(c1 + 1)
            a.wait_vm(("c", c1)); e("s_barrier")
            if opt.get("tsl"): stamp(g, 3 + c1, True)
            F = reads(s + 1)
            for f in F[:6]: f()
            if c1 + 3 < 8: a.bg += dma_list(c1 + 3)
            if c1 == 4: a.bg += [lambda: flag_store(g, 0)] + SE[3:]
            a.bg += sched.get(c1, [])
            if c1 == 4: st.bg_issue(1)
            if c1 == 5:
                a.bg += [wo_dma(i) for i in range(6)]; st.release([1]); st.bg_issue(1)
            if c1 == 6:
                a.bg += [wo_dma(i) for i in range(6, 12)]; st.release([2]); st.bg_issue(1)
            if c1 == 7:
                a.bg += [wo_dma(i) for i in range(12, 16)]; st.release([3, 14]); st.bg_issue(2)
            interleave(M[PRE:], F[6:])
        elif s < 14:
            interleave(M, reads(s + 1))
        else:
            M[0]()
            interleave(M[1:9], reads(15))
            Dg = [V.alloc() for _ in range(5)]
            def sel(t):
                e(f"v_cndmask_b32 v{Dg[t]}, v{ST[t]}, v{ST[t]+1}, {sr(sM[0],2)}")
                e(f"v_cndmask_b32 v{Dg[t]}, v{Dg[t]}, v{ST[t]+2}, {sr(sM[1],2)}")
                e(f"v_cndmask_b32 v{Dg[t]}, v{Dg[t]}, v{ST[t]+3}, {sr(sM[2],2)}")
            interleave(M[9:14], [lambda t=t: sel(t) for t in range(5)])
            e("s_mov_b32 exec_lo, 0x00f0000f"); e("s_mov_b32 exec_hi, 0xf0000f00")
            for t in range(5): a.ds(f"ds_write_b32 v{vPw}, v{Dg[t]} offset:{P_OFF + 256*t}", "pw")
            e("s_mov_b64 exec, -1")
            for m in M[14:]: m()
    a.wait_lg(); e("s_barrier")
    stamp(g, 2)
    Pq = [V.alloc(4), V.alloc(4)]
    a.ds(f"ds_read_b128 {vr(Pq[0],4)}, v{vPr} offset:{P_OFF}", "pr")
    a.ds(f"ds_read_b128 {vr(Pq[1],4)}, v{vPr2} offset:{P_OFF+1024}", "pr")
    a.interval = opt.get("iv2", 70)
    a.bg += xr_loads + [lambda: flag_load(g, vFa)]
    st.release([4, 5, 15, 16, 17]); st.bg_issue(5)
    st.bg_cycle(opt.get("ne", 3))
    for m in M[:5]: m()
    a.wait_lg("pr")
    sInv = S.alloc(); sEps = S.alloc()
    e(f"s_mov_b32 s{sInv}, 0x3b000000")
    e(f"s_mov_b32 s{sEps}, 0x3727c5ac")
    def fin(p):
        q = Pq[p]
        return [
            lambda: (e(f"v_add_f32 v{q}, v{q}, v{q+1}"), e(f"v_add_f32 v{q+2}, v{q+2}, v{q+3}")),
            lambda: (e(f"v_mul_f32 v{q}, s{sInv}, v{q}"), e(f"v_mov_b32 v{q+3}, s{sEps}")),
            lambda: (e(f"v_fmac_f32 v{q+3}, s{sInv}, v{q+2}"), e(f"v_fma_f32 v{q+3}, -v{q}, v{q}, v{q+3}")),
            lambda: (e(f"v_max_f32 v{q+3}, s{sEps}, v{q+3}"), e(f"v_rsq_f32 v{q+1}, v{q+3}")),
            lambda: (e(f"v_mul_f32 v{q}, -v{q}, v{q+1}"),),
        ]
    F0, F1 = fin(0), fin(1)
    interleave(M[5:15], [f for pr in zip(F0, F1) for f in pr])
    a.ds(f"ds_write_b64 v{vNp}, {vr(Pq[0],2)}", "nw")
    a.ds(f"ds_write2_b32 v{vNw}, v{Pq[0]}, v{Pq[0]+1} offset0:160 offset1:240", "nw")
    a.ds(f"ds_write_b64 v{vNl}, {vr(Pq[1],2)} offset:512", "nw")
    a.ds(f"ds_write2_b32 v{vNw2}, v{Pq[1]}, v{Pq[1]+1} offset0:160 offset1:240", "nw")
    a.wait_lg("nw")
    for b in range(2):
        for t in range(5): V.release(XF[b][t], 4)
        for t in range(3): V.release(WF[b][t], 4)
    for t in range(5): V.release(ST[t], 4); V.release(Dg[t])
    for q in Pq: V.release(q, 4)
    for r in vXa + vHa + vWa[0] + vWa[1] + [vXo, vHo, vWo, vPw, vPr, vPr2, vNw, vNw2, vNp]: V.release(r)
    assert not any(f in a.bg for f in g.sent)
    V.release(g.vSent, 4)
    NL = [V.alloc(2) for t in range(5)]
    NMr = [V.alloc(4) for t in range(5)]; Rr = [V.alloc(4) for t in range(5)]
    for t in range(5): a.ds(f"ds_read_b64 {vr(NL[t],2)}, v{vNl} offset:{128*t}", ("nl", t))
    for t in range(5):
        a.ds(f"ds_read_b128 {vr(NMr[t],4)}, v{vNr} offset:{640+64*t}", ("nr", t))
        a.ds(f"ds_read_b128 {vr(Rr[t],4)}, v{vNr} offset:{960+64*t}", ("nr", t))
    cs = [V.alloc(4), V.alloc(4)]; csV = V.alloc(2)
    for ty in range(2):
        for i in range(4):
            e(f"v_mov_b32_dpp v{cs[ty]+i}, v{acc[ty][0]+i} row_newbcast:0 row_mask:0xf bank_mask:0xf")
    e(f"v_mov_b32 v{csV}, v{acc[2][0]}")
    e(f"v_mov_b32 v{csV+1}, v{acc[2][0]}")
    e(f"v_permlane32_swap_b32 v{csV}, v{csV+1}")
    tmp = V.alloc(4)
    Qp = V.alloc(8); Kp = V.alloc(10); Vp = V.alloc(10)
    def normT(ty, t, dst):
        r = acc[ty][t]; nl = NL[t]
        for h in range(2):
            e(f"v_pk_mul_f32 {vr(tmp+2*h,2)}, {vr(cs[ty]+2*h,2)}, {vr(nl,2)} op_sel:[0,0] op_sel_hi:[1,0]")
        for h in range(2):
            e(f"v_pk_fma_f32 {vr(r+2*h,2)}, {vr(r+2*h,2)}, {vr(nl,2)}, {vr(tmp+2*h,2)} op_sel:[0,1,0] op_sel_hi:[1,1,1]")
        for h in range(2):
            e(f"v_cvt_pk_bf16_f32 v{dst+h}, v{r+2*h}, v{r+2*h+1}")
    def normV(t):
        r = acc[2][t]
        for h in range(2):
            e(f"v_pk_mul_f32 {vr(tmp+2*h,2)}, {vr(NMr[t]+2*h,2)}, {vr(csV,2)} op_sel:[0,0] op_sel_hi:[1,0]")
        for h in range(2):
            e(f"v_pk_fma_f32 {vr(r+2*h,2)}, {vr(r+2*h,2)}, {vr(Rr[t]+2*h,2)}, {vr(tmp+2*h,2)}")
        for h in range(2):
            e(f"v_cvt_pk_bf16_f32 v{Vp+2*t+h}, v{r+2*h}, v{r+2*h+1}")
    Sc = [V.alloc(4) for t in range(4)]; Sp = [V.alloc(4) for t in range(4)]
    a.wait_lg(("nl", 0)); normT(1, 0, Kp)
    for t in range(1, 5):
        a.wait_lg(("nl", t))
        normT(1, t, Kp + 2*t); normT(0, t, Qp + 2*(t-1))
        if t > 1:
            u = t - 1
            e(f"v_mfma_f32_16x16x16_bf16 {vr(Sc[u-1],4)}, {vr(Kp+2*u,2)}, {vr(Qp+2*(u-1),2)}, {vr(vBias,4)}")
            e(f"v_mfma_f32_16x16x16_bf16 {vr(Sp[u-1],4)}, {vr(Kp+2*u-2,2)}, {vr(Qp+2*(u-1),2)}, {vr(vBias1 if u == 1 else vBias,4)}")
    a.wait_lg(("nr", 0)); normV(0)
    u = 4
    e(f"v_mfma_f32_16x16x16_bf16 {vr(Sc[u-1],4)}, {vr(Kp+2*u,2)}, {vr(Qp+2*(u-1),2)}, {vr(vBias,4)}")
    e(f"v_mfma_f32_16x16x16_bf16 {vr(Sp[u-1],4)}, {vr(Kp+2*u-2,2)}, {vr(Qp+2*(u-1),2)}, {vr(vBias,4)}")
    a.wait_lg(("nr", 2)); normV(1); normV(2)
    mx = [V.alloc() for t in range(4)]
    for t in range(4):
        for i in range(4):
            e(f"v_cndmask_b32 v{Sc[t]+i}, v{Sp[t]+i}, v{Sc[t]+i}, {sr(sLe[i],2)}")
        e(f"v_max3_f32 v{mx[t]}, v{Sc[t]}, v{Sc[t]+1}, v{Sc[t]+2}")
        e(f"v_max_f32 v{mx[t]}, v{mx[t]}, v{Sc[t]+3}")
    a.wait_lg(("nr", 4))
    e(f"v_permlane32_swap_b32 v{mx[0]}, v{mx[1]}")
    e(f"v_permlane32_swap_b32 v{mx[2]}, v{mx[3]}")
    e(f"v_max_f32 v{mx[0]}, v{mx[0]}, v{mx[1]}")
    e(f"v_max_f32 v{mx[2]}, v{mx[2]}, v{mx[3]}")
    normV(3)
    e(f"v_permlane16_swap_b32 v{mx[0]}, v{mx[2]}")
    sC = S.alloc(); sNC = S.alloc()
    cbits = f32bits(0.25 * math.log2(math.e))
    e(f"s_mov_b32 s{sC}, {cbits:#x}")
    e(f"s_mov_b32 s{sNC}, {cbits | 0x80000000:#x}")
    e(f"v_max_f32 v{mx[0]}, v{mx[0]}, v{mx[2]}")
    e(f"v_mul_f32 v{mx[0]}, s{sNC}, v{mx[0]}")
    e(f"v_mov_b32 v{mx[2]}, v{mx[0]}")
    normV(4)
    e(f"v_permlane16_swap_b32 v{mx[0]}, v{mx[2]}")
    e(f"v_mov_b32 v{mx[1]}, v{mx[0]}")
    e(f"v_mov_b32 v{mx[3]}, v{mx[2]}")
    e(f"v_permlane32_swap_b32 v{mx[0]}, v{mx[1]}")
    e(f"v_permlane32_swap_b32 v{mx[2]}, v{mx[3]}")
    Pk = NL[:4]
    Ot = Sc; Ls = acc[0][1:5]
    for t in range(4):
        for i in range(4): e(f"v_fma_f32 v{Sc[t]+i}, v{Sc[t]+i}, s{sC}, v{mx[t]}")
        for i in range(4): e(f"v_exp_f32 v{Sc[t]+i}, v{Sc[t]+i}")
        for h in range(2): e(f"v_cvt_pk_bf16_f32 v{Pk[t]+h}, v{Sc[t]+2*h}, v{Sc[t]+2*h+1}")
        for h in range(2):
            e(f"v_and_b32 v{Sp[t]+h}, v{Pk[t]+h}, v{vMp+h}")
            e(f"v_and_b32 v{Sp[t]+2+h}, v{Pk[t]+h}, v{vMc+h}")
        e(f"v_mfma_f32_16x16x16_bf16 {vr(Ls[t],4)}, {vr(vOne,2)}, {vr(Pk[t],2)}, 0")
        e(f"v_mfma_f32_16x16x32_bf16 {vr(Ot[t],4)}, {vr(Vp+2*t,4)}, {vr(Sp[t],4)}, 0")
    left = a.bg; a.bg = []
    assert "fl" in a.vm, "flag load not issued yet"
    if opt.get("loc"): flag_check(g, vFa)
    Op = [acc[1][0], acc[1][1]]
    for t in range(4):
        e(f"v_rcp_f32 v{Ls[t]}, v{Ls[t]}")
        for h in range(2):
            e(f"v_pk_mul_f32 {vr(Ot[t]+2*h,2)}, {vr(Ot[t]+2*h,2)}, {vr(Ls[t],2)} op_sel:[0,0] op_sel_hi:[1,0]")
        for h in range(2):
            e(f"v_cvt_pk_bf16_f32 v{Op[t>>1]+2*(t&1)+h}, v{Ot[t]+2*h}, v{Ot[t]+2*h+1}")
        if t & 1:
            o = Op[t >> 1]
            e(f"v_permlane32_swap_b32 v{o}, v{o+2}")
            e(f"v_permlane32_swap_b32 v{o+1}, v{o+3}")
            so = "0" if t == 1 else f"s{g.sO2}"
            store_sel(g, [f"buffer_store_dwordx4 {vr(o,4)}, v{g.vOa}, {sr(g.sWS,4)}, {so} offen"], "ost")
    stamp(g, 3)
    print("P1 end: bg left", len(left), "issued", st.nx, "drained", st.ndrained)
    a.bg = left; a.run_bg()
    if not opt.get("loc"): flag_check(g, vFa)
    e("s_nop 1")
    keep = {0, *g.vT, g.vJ, vL, vN, vG} | set(g.keepv)
    for i in range(256):
        V.free[i] = i not in keep
    for r in ([sRow, sP4, s64k, sWs, g.s7168, sInv, sEps, sC, sNC, sOo, g.sO2]): S.release(r)
    for r in sM + sLe + [sHm]: S.release(r, 2)

def allreduce2(g, s, q, t):
    e = g.a.e
    e(f"v_permlane32_swap_b32 v{s}, v{q}")
    e(f"v_add_f32 v{s}, v{s}, v{q}")
    e(f"v_mov_b32 v{t}, v{s}")
    e(f"v_permlane16_swap_b32 v{s}, v{t}")
    e(f"v_add_f32 v{s}, v{s}, v{t}")
    e(f"v_mov_b32 v{q}, v{s}")
    e(f"v_permlane32_swap_b32 v{s}, v{q}")

def phase2(g):
    a, V, S = g.a, g.V, g.S; e = a.e; st = g.st; opt = g.opt
    vT0, vT1, vT2, vT3 = g.vT; vL, vN, vG = g.vL, g.vN, g.vG
    ws = sr(g.sWS, 4)
    vOl = V.alloc(); vOi = V.alloc(); vP = V.alloc()
    e(f"s_lshl_b32 s{g.sT}, s{g.sT2i}, 14")
    e(f"v_lshl_add_u32 v{vOl}, v{vL}, 4, s{g.sT}")
    e(f"v_and_b32 v{vT0}, 31, v{vL}")
    e(f"v_lshl_add_u32 v{vOi}, v{vT0}, 9, s{g.sT}")
    vWa = [V.alloc() for _ in range(4)]
    e(f"v_lshrrev_b32 v{vT0}, 1, v{vG}")
    e(f"v_and_b32 v{vT1}, 1, v{vG}")
    e(f"v_lshlrev_b32 v{vT0}, 4, v{vT0}")
    e(f"v_lshl_add_u32 v{vT0}, v{vT1}, 2, v{vT0}")
    e(f"v_lshrrev_b32 v{vT2}, 2, v{vN}")
    e(f"v_add_u32 v{vT0}, v{vT0}, v{vT2}")
    e(f"v_lshlrev_b32 v{vT0}, 7, v{vT0}")
    e(f"v_and_b32 v{vT2}, 3, v{vN}")
    e(f"v_lshl_add_u32 v{vT0}, v{vT2}, 3, v{vT0}")
    e(f"v_lshrrev_b32 v{vT2}, 3, v{vN}")
    e(f"v_lshl_add_u32 v{vT1}, v{vT1}, 1, v{vT2}")
    e(f"v_lshl_add_u32 v{vT0}, v{vT1}, 5, v{vT0}")
    e(f"v_add_u32 v{vWa[0]}, {L_WO}, v{vT0}")
    for mt in range(1, 4): e(f"v_xor_b32 v{vWa[mt]}, {32*mt}, v{vWa[0]}")
    acc = V.alloc(16, 4)
    a.wait_vm("xr")
    for r in range(8):
        e(f"v_lshlrev_b32 v{acc+2*r}, 16, v{g.vXr+r}")
        e(f"v_and_b32 v{acc+2*r+1}, 0xffff0000, v{g.vXr+r}")
    V.release(g.vXr, 8)
    a.wait_vm("wo"); e("s_barrier")
    flag_store(g, 1)
    OF = V.alloc(64, 4); NB = opt.get("nb2", 8)
    AF = [V.alloc(16, 4) for _ in range(NB)]
    def rd(k):
        for mt in range(4):
            for h in range(2):
                a.ds(f"ds_read_b64_tr_b16 {vr(AF[k%NB]+4*mt+2*h,2)}, v{vWa[mt]} offset:{k*4096+h*1024}", ("wf", k))
    for k in range(NB): rd(k)
    st.drain(opt.get("d1", 3))
    sO = S.alloc()
    def ldline(k): return f"buffer_load_dwordx4 {vr(OF+4*k,4)}, v{vOl}, {ws}, s{sO} offen offset:{(k%4)*1024} sc1"
    SP = opt.get("sp2", 4)
    def body():
        a.vmem(f"buffer_load_dword v{vP}, v{vOi}, {ws}, 0 offen sc1", "poll")
        for k in range(SP):
            if k % 4 == 0: e(f"s_mov_b32 s{sO}, {k*1024}")
            a.vmem(ldline(k), ("of", k))
        a.wait_vm("poll")
        e(f"v_cmp_eq_u32 vcc, -1, v{vP}")
    spin_loop(g, "op", body)
    stamp(g, 4)
    for k in range(SP, 16):
        if k % 4 == 0: e(f"s_mov_b32 s{sO}, {k*1024}")
        a.vmem(ldline(k), ("of", k))
    for f in g.sched.get(8, []): f()
    a.interval = opt.get("iv3", 70)
    st.bg_issue(opt.get("i1", 3))
    for k in range(16):
        if k % 2 == 0:
            a.wait_vm(("of", k + 1))
            verify(g, [OF + 4*k, OF + 4*k + 4], vP, [f"s_mov_b32 s{sO}, {(k//4)*4096}", ldline(k), ldline(k + 1)])
        a.wait_lg(("wf", k))
        for mt in range(4):
            e(f"v_mfma_f32_16x16x32_bf16 {vr(acc+4*mt,4)}, {vr(AF[k%NB]+4*mt,4)}, {vr(OF+4*k,4)}, {vr(acc+4*mt,4)}")
        if k >= 1 and k - 1 + NB < 16: rd(k - 1 + NB)
    S.release(sO)
    stamp(g, 5)
    V.release(OF, 64)
    for r in AF: V.release(r, 16)
    for r in vWa + [vOl, vOi]: V.release(r)
    sm = V.alloc(2); sq = V.alloc(2); stt = V.alloc(2)
    e(f"v_pk_add_f32 {vr(sm,2)}, {vr(acc,2)}, {vr(acc+2,2)}")
    e(f"v_pk_mul_f32 {vr(sq,2)}, {vr(acc,2)}, {vr(acc,2)}")
    e(f"v_pk_fma_f32 {vr(sq,2)}, {vr(acc+2,2)}, {vr(acc+2,2)}, {vr(sq,2)}")
    for r in range(2, 8):
        e(f"v_pk_add_f32 {vr(sm,2)}, {vr(sm,2)}, {vr(acc+2*r,2)}")
        e(f"v_pk_fma_f32 {vr(sq,2)}, {vr(acc+2*r,2)}, {vr(acc+2*r,2)}, {vr(sq,2)}")
    e(f"v_add_f32 v{stt}, v{sm}, v{sm+1}")
    e(f"v_add_f32 v{stt+1}, v{sq}, v{sq+1}")
    allreduce2(g, stt, stt + 1, sm)
    a.run_bg()
    e("s_mov_b64 exec, 0xffff")
    store_sel(g, [f"buffer_store_dwordx2 {vr(stt,2)}, v{g.vSa}, {ws}, 0 offen"], "st")
    e("s_mov_b64 exec, -1")
    hp = V.alloc(8)
    for r in range(8): e(f"v_cvt_pk_bf16_f32 v{hp+r}, v{acc+2*r}, v{acc+2*r+1}")
    e(f"v_lshrrev_b32 v{vT0}, 1, v{vG}")
    e(f"v_bfe_u32 v{vT1}, v{g.vSl}, 1, 3")
    e(f"v_xor_b32 v{vT0}, v{vT0}, v{vT1}")
    e(f"v_lshlrev_b32 v{vT0}, 4, v{vT0}")
    e(f"v_lshl_add_u32 v{vT0}, v{g.vSl}, 7, v{vT0}")
    e(f"v_and_b32 v{vT1}, 1, v{vG}")
    e(f"v_lshl_add_u32 v{vT0}, v{vT1}, 3, v{vT0}")
    for mt in range(4):
        if mt: e(f"v_xor_b32 v{vT1}, {32*mt}, v{vT0}")
        a.ds(f"ds_write_b64 v{vT1 if mt else vT0}, {vr(hp+2*mt,2)} offset:{L_H}", "hw")
    vTw = V.alloc(); vTw2 = V.alloc(); TA = [V.alloc(), V.alloc()]
    e(f"v_bfe_u32 v{vT0}, v{vN}, 1, 1")
    e(f"v_lshlrev_b32 v{vT0}, 6, v{vT0}")
    e(f"v_lshl_add_u32 v{vT0}, v{vG}, 3, v{vT0}")
    e(f"v_lshl_add_u32 v{vT0}, v{vN}, 7, v{vT0}")
    e(f"v_add_u32 v{vTw}, s{g.sW2k}, v{vT0}")
    e(f"v_xor_b32 v{vTw2}, 64, v{vTw}")
    e(f"s_lshr_b32 s{g.sT}, s{g.sW}, 1")
    e(f"s_lshl_b32 s{g.sT}, s{g.sT}, 6")
    e(f"v_xor_b32 v{TA[0]}, s{g.sT}, v{g.vTA[0][0]}")
    e(f"v_xor_b32 v{TA[1]}, 64, v{TA[0]}")
    vSl = V.alloc(); pp = V.alloc(4)
    e(f"v_lshlrev_b32 v{vT0}, 3, v{vN}")
    e(f"v_lshl_add_u32 v{vT0}, v{vG}, 8, v{vT0}")
    e(f"v_add_u32 v{vSl}, s{g.sStb}, v{vT0}")
    e("s_barrier")
    st.release(list(range(6, 14)))
    st.drain(opt.get("d2", 3))
    def body():
        a.vmem(f"buffer_load_dwordx2 {vr(pp,2)}, v{vSl}, {ws}, 0 offen sc1", "sp")
        a.vmem(f"buffer_load_dwordx2 {vr(pp+2,2)}, v{vSl}, {ws}, 0 offen offset:128 sc1", "sp")
        a.wait_vm()
        e(f"v_max_u32 v{vT0}, v{pp+1}, v{pp+3}")
        e(f"v_cmp_eq_u32 vcc, -1, v{vT0}")
    spin_loop(g, "st", body)
    stamp(g, 6)
    for f in g.sched.get(9, []): f()
    st.bg_issue(opt.get("i2", 2))
    e(f"v_pk_add_f32 {vr(stt,2)}, {vr(pp,2)}, {vr(pp+2,2)}")
    allreduce2(g, stt, stt + 1, sm)
    sInv = S.alloc(); sEps = S.alloc()
    e(f"s_mov_b32 s{sInv}, 0x3b000000")
    e(f"s_mov_b32 s{sEps}, 0x3727c5ac")
    m, var, r1, t = stt, stt + 1, sm, sm + 1
    e(f"v_mul_f32 v{m}, s{sInv}, v{m}")
    e(f"v_mul_f32 v{var}, s{sInv}, v{var}")
    e(f"v_fma_f32 v{var}, -v{m}, v{m}, v{var}")
    e(f"v_max_f32 v{var}, 0, v{var}")
    e(f"v_add_f32 v{t}, s{sEps}, v{var}")
    e(f"v_rsq_f32 v{r1}, v{t}")
    e(f"v_mul_f32 v{t}, v{r1}, v{r1}")
    e(f"v_fma_f32 v{t}, v{t}, v{var}, s{sEps}")
    e(f"v_rsq_f32 v{t}, v{t}")
    e(f"v_mul_f32 v{sq+1}, v{r1}, v{t}")
    e(f"v_mul_f32 v{sq}, -v{m}, v{sq+1}")
    for r in range(8):
        e(f"v_pk_fma_f32 {vr(acc+2*r,2)}, {vr(acc+2*r,2)}, {vr(sq,2)}, {vr(sq,2)} op_sel:[0,1,0] op_sel_hi:[1,1,0]")
    a.wait_lg("hw")
    for mt in range(4):
        for r in (2*mt, 2*mt + 1): e(f"v_cvt_pk_bf16_f32 v{hp+r}, v{acc+2*r}, v{acc+2*r+1}")
        a.ds(f"ds_write_b64 v{vTw2 if mt >= 2 else vTw}, {vr(hp+2*mt,2)} offset:{L_TR + 32*(mt&1)}", "tw")
    a.run_bg()
    a.wait_lg("tw")
    for dh in range(2):
        for h in range(2):
            a.ds(f"ds_read_b64_tr_b16 {vr(acc+4*dh+2*h,2)}, v{TA[dh]} offset:{L_TR + 1024*h}", ("trh", dh))
    for dh in range(2):
        a.wait_lg(("trh", dh))
        a.vmem(f"buffer_store_dwordx4 {vr(acc+4*dh,4)}, v{g.vHa}, {ws}, 0 offen offset:{1024*dh} sc1", "hst")
    stamp(g, 7)
    for f in g.sched.get(10, []): f()
    e("s_nop 1")
    for r, n in ((acc, 16), (hp, 8), (sm, 2), (sq, 2), (stt, 2), (pp, 4), (vSl, 1), (vTw, 1), (vTw2, 1), (TA[0], 1), (TA[1], 1), (vP, 1)): V.release(r, n)
    S.release(sInv); S.release(sEps)
    print("P2 end: issued", st.nx, "drained", st.ndrained)

def gemm_splitk(g, name, nsteps, srd, vB, vI, acc, a_is_stream, stamps, per_step=None):
    a, V, S = g.a, g.V, g.S; e = a.e; opt = g.opt
    NB = opt.get("nb3", 14)
    F = V.alloc(8 * NB, 4); vP = V.alloc()
    sO = S.alloc()
    def ldline(t, b): return f"buffer_load_dwordx4 {vr(F+8*(t%NB)+4*b,4)}, v{vB[b]}, {srd}, s{sO} offen offset:{(t%2)*2048} sc1"
    def ld(t):
        if t % 2 == 0: e(f"s_mov_b32 s{sO}, {t*2048}")
        for b in range(2): a.vmem(ldline(t, b), ("f", t))
    SP = opt.get("sp3", 4)
    def body():
        a.vmem(f"buffer_load_dword v{vP}, v{vI}, {srd}, 0 offen sc1", "poll")
        for t in range(SP): ld(t)
        a.wait_vm("poll")
        e(f"v_cmp_eq_u32 vcc, -1, v{vP}")
    spin_loop(g, name + "p", body)
    stamp(g, stamps[0])
    for t in range(SP, NB - 1): ld(t)
    sO2 = S.alloc()
    for t in range(nsteps):
        a.wait_vm(("f", t))
        f = F + 8*(t % NB)
        verify(g, [f, f + 4], vP, [f"s_mov_b32 s{sO2}, {(t//2)*4096}"] + [ldline(t, b).replace(f", s{sO} offen", f", s{sO2} offen") for b in range(2)])
        for i in range(4):
            if a_is_stream: A, B = vr(f + 4*(i >> 1), 4), ar((t*2 + (i & 1))*4, 4)
            else: A, B = ar((t*2 + (i >> 1))*4, 4), vr(f + 4*(i & 1), 4)
            C = vr(acc + 16*i, 16) if (t or i == 0) else "0"
            e(f"v_mfma_f32_32x32x16_bf16 {vr(acc+16*i,16)}, {A}, {B}, {C}")
            if i == 0 and t + NB - 1 < nsteps: ld(t + NB - 1)
            if per_step: per_step(t, i, t + NB - 1 >= nsteps)
    stamp(g, stamps[1])
    S.release(sO); S.release(sO2); V.release(vP)
    vW = V.alloc(); vR = V.alloc()
    e(f"v_lshlrev_b32 v{vR}, 4, v{g.vL}")
    e(f"v_add_u32 v{vR}, {L_RED}, v{vR}")
    for i in range(1, 4):
        e(f"s_xor_b32 s{g.sT}, s{g.sW}, {i}")
        e(f"s_mul_i32 s{g.sT}, s{g.sT}, 12288")
        e(f"v_add_u32 v{vW}, s{g.sT}, v{vR}")
        for r in range(4):
            a.ds(f"ds_write_b128 v{vW}, {vr(acc+16*i+4*r,4)} offset:{(i-1)*4096 + r*1024}", "rw")
    e(f"s_mul_i32 s{g.sT}, s{g.sW}, 12288")
    e(f"v_add_u32 v{vR}, s{g.sT}, v{vR}")
    a.wait_lg("rw"); e("s_barrier")
    for i in range(3):
        for r in range(4):
            a.ds(f"ds_read_b128 {vr(F+16*i+4*r,4)}, v{vR} offset:{i*4096 + r*1024}", ("rr", i))
    for i in range(3):
        a.wait_lg(("rr", i))
        for r in range(8):
            e(f"v_pk_add_f32 {vr(acc+2*r,2)}, {vr(acc+2*r,2)}, {vr(F+16*i+2*r,2)}")
    V.release(F, 8*NB); V.release(vW); V.release(vR); V.release(acc + 16, 48)

def phase34(g):
    a, V, S = g.a, g.V, g.S; e = a.e; st = g.st; opt = g.opt
    vT0, vT1, vT2, vT3 = g.vT; vL, vN, vG = g.vL, g.vN, g.vG
    ws = sr(g.sWS, 4); h3 = sr(g.sH3, 4)
    sX1 = S.alloc(); sX0 = S.alloc()
    e(f"s_lshr_b32 s{sX1}, s{g.sW}, 1")
    e(f"s_lshl_b32 s{sX1}, s{sX1}, 6")
    e(f"s_and_b32 s{sX0}, s{g.sW}, 1")
    e(f"s_lshl_b32 s{sX0}, s{sX0}, 6")
    bq = V.alloc(8); acc = V.alloc(64, 4); vb = V.alloc(); vS = V.alloc()
    e(f"v_lshrrev_b32 v{vT0}, 5, v{vL}")
    e(f"s_min_u32 s{g.sT}, s{g.sFt}, 27")
    e(f"s_lshl_b32 s{g.sT}, s{g.sT}, 7")
    e(f"s_add_u32 s{g.sT}, s{g.sT}, s{sX1}")
    e(f"v_lshl_add_u32 v{vT0}, v{vT0}, 3, s{g.sT}")
    for k in range(4):
        a.vmem(f"global_load_dwordx2 {vr(bq+2*k,2)}, v{vT0}, {sr(g.sB1,2)} offset:{16*k}", "b1")
    e(f"v_and_b32 v{vS}, 31, v{vL}")
    e(f"s_lshr_b32 s{g.sT}, s{sX0}, 1")
    e(f"v_add_u32 v{vS}, s{g.sT}, v{vS}")
    e(f"s_lshl_b32 s{g.sT2}, s{g.sHi}, 7")
    e(f"v_lshl_add_u32 v{vT0}, v{vS}, 1, s{g.sT2}")
    a.vmem(f"global_load_ushort v{vb}, v{vT0}, {sr(g.sB2,2)}", "b2")
    vFa = V.alloc(); g.vFl = V.alloc(4)
    e(f"v_lshlrev_b32 v{vFa}, 4, v{vL}")
    e(f"v_add_u32 v{vFa}, {WS_FL}, v{vFa}")
    flag_load(g, vFa, 1)
    NW2 = opt.get("nw2", 8)
    lim = 32 + NW2
    while st.ndrained < 32:
        while st.can_issue() and st.nx < lim and len(a.vm) < 56: st.issue(1)
        st.drain(1)
    while st.can_issue() and st.nx < lim: st.issue(1)
    print("P3 start: issued", st.nx, "drained", st.ndrained)
    flag_check(g, vFa, 1)
    V.release(vFa); V.release(g.vFl, 4)
    a.wait_vm("b1")
    for r in range(8):
        e(f"v_lshlrev_b32 v{acc+2*r}, 16, v{bq+r}")
        e(f"v_and_b32 v{acc+2*r+1}, 0xffff0000, v{bq+r}")
    V.release(bq, 8)
    vB = [V.alloc(), V.alloc()]; vI = V.alloc()
    e(f"s_lshl_b32 s{g.sT}, s{g.sD3}, 2")
    e(f"s_add_u32 s{g.sT}, s{g.sT}, s{g.sW}")
    e(f"s_lshl_b32 s{g.sT}, s{g.sT}, 16")
    e(f"s_add_u32 s{g.sT}, s{g.sT}, {WS_HH}")
    e(f"v_and_b32 v{vT0}, 31, v{vL}")
    e(f"v_lshl_add_u32 v{vI}, v{vT0}, 11, s{g.sT}")
    e(f"v_add_u32 v{vI}, 1024, v{vI}")
    e(f"s_lshl_b32 s{g.sT2}, s{sX0}, 4")
    e(f"s_add_u32 s{g.sT}, s{g.sT}, s{g.sT2}")
    e(f"v_lshl_add_u32 v{vB[0]}, v{vL}, 4, s{g.sT}")
    e(f"v_xor_b32 v{vB[1]}, 1024, v{vB[0]}")
    a.wait_lg()
    e(f"s_xor_b32 s{g.sT}, s{sX0}, s{sX1}")
    for b in range(3):
        for p in range(2): e(f"v_xor_b32 v{g.vTA[b][p]}, s{g.sT}, v{g.vTA[b][p]}")
    st.nofree = set(range(6, 12))
    st.free = [x for x in st.free if x[0] not in st.nofree]
    npre = st.nx - 32
    BAR = max(npre + 2, 4)
    def per_step(t, i, tail):
        if st.fl and st.fl[0][0][1] < min(t, npre):
            if i == 1: st.drain_part(0)
            if i == 2: st.drain_part(1)
        if t == BAR and i == 3: a.wait_lg(); e("s_barrier")
        if tail and i in (0, 2) and st.can_issue(): st.issue_half()
    stamp(g, 8)
    gemm_splitk(g, "p3", 32, h3, vB, vI, acc, False, (9, 10), per_step)
    a.interval = opt.get("iv4", 70)
    st.bg_cycle(opt.get("ng", 3))
    c0 = -2.0 * math.sqrt(2.0 / math.pi) * math.log2(math.e); c1 = c0 * 0.044715
    cc = V.alloc(2); t = V.alloc(16, 4)
    e(f"v_mov_b32 v{cc}, {f32bits(c0):#x}")
    e(f"v_mov_b32 v{cc+1}, {f32bits(c1):#x}")
    for r in range(8):
        e(f"v_pk_mul_f32 {vr(t+2*r,2)}, {vr(acc+2*r,2)}, {vr(acc+2*r,2)}")
    for r in range(8):
        e(f"v_pk_fma_f32 {vr(t+2*r,2)}, {vr(t+2*r,2)}, {vr(cc,2)}, {vr(cc,2)} op_sel:[0,1,0] op_sel_hi:[1,1,0]")
    for r in range(8):
        e(f"v_pk_mul_f32 {vr(t+2*r,2)}, {vr(t+2*r,2)}, {vr(acc+2*r,2)}")
    for r in range(16): e(f"v_exp_f32 v{t+r}, v{t+r}")
    for r in range(8):
        e(f"v_pk_add_f32 {vr(t+2*r,2)}, {vr(t+2*r,2)}, 1.0 op_sel_hi:[1,0]")
    for r in range(16): e(f"v_rcp_f32 v{t+r}, v{t+r}")
    left = a.bg; a.bg = []
    for k in range(2):
        for r in range(4*k, 4*k + 4):
            e(f"v_pk_mul_f32 {vr(t+2*r,2)}, {vr(t+2*r,2)}, {vr(acc+2*r,2)}")
        dst = V.alloc(4)
        for r in range(4): e(f"v_cvt_pk_bf16_f32 v{dst+r}, v{t+8*k+2*r}, v{t+8*k+2*r+1}")
        a.vmem(f"buffer_store_dwordx4 {vr(dst,4)}, v{g.vUa}, {h3}, 0 offen offset:{2048*k} sc1", "ust")
        if k == 0: d0 = dst
    stamp(g, 11)
    a.bg = left; a.run_bg()
    V.release(acc, 16); V.release(t, 16); V.release(cc, 2)
    for r in vB + [vI]: V.release(r)
    acc = V.alloc(64, 4); hq = V.alloc(8)
    V.release(d0, 4); V.release(dst, 4)
    e(f"v_bfe_u32 v{vT0}, v{vS}, 1, 3")
    e(f"v_lshlrev_b32 v{vT0}, 4, v{vT0}")
    e(f"v_xor_b32 v{vT0}, s{sX1}, v{vT0}")
    e(f"v_lshl_add_u32 v{vT0}, v{vS}, 7, v{vT0}")
    e(f"v_lshrrev_b32 v{vT1}, 5, v{vL}")
    e(f"v_lshl_add_u32 v{vT0}, v{vT1}, 3, v{vT0}")
    for k in range(4):
        if k: e(f"v_xor_b32 v{vT1}, {16*k}, v{vT0}")
        a.ds(f"ds_read_b64 {vr(hq+2*k,2)}, v{vT1 if k else vT0} offset:{L_H}", "hr")
    while st.ndrained < 60:
        while st.can_issue(): st.issue_half()
        st.drain(1)
    a.wait_vm("b2"); a.wait_lg("hr")
    e(f"v_lshlrev_b32 v{vb}, 16, v{vb}")
    for r in range(8):
        e(f"v_lshlrev_b32 v{acc+2*r}, 16, v{hq+r}")
        e(f"v_and_b32 v{acc+2*r+1}, 0xffff0000, v{hq+r}")
    for r in range(16): e(f"v_add_f32 v{acc+r}, v{acc+r}, v{vb}")
    V.release(hq, 8); V.release(vb)
    vB = [V.alloc(), V.alloc()]; vI = V.alloc()
    e(f"s_lshl_b32 s{g.sT}, s{g.sLo}, 2")
    e(f"s_add_u32 s{g.sT}, s{g.sT}, s{g.sW}")
    e(f"s_mul_i32 s{g.sT}, s{g.sT}, {28*2048}")
    e(f"s_add_u32 s{g.sT}, s{g.sT}, {WS_UF}")
    e(f"v_min_u32 v{vT0}, 27, v{vL}")
    e(f"v_lshrrev_b32 v{vT1}, 1, v{vT0}")
    e(f"v_lshl_add_u32 v{vI}, v{vT1}, 12, s{g.sT}")
    e(f"v_and_b32 v{vT0}, 1, v{vT0}")
    e(f"v_lshl_add_u32 v{vI}, v{vT0}, 10, v{vI}")
    e(f"v_add_u32 v{vI}, 2048, v{vI}")
    e(f"s_lshl_b32 s{g.sT2}, s{sX1}, 4")
    e(f"s_add_u32 s{g.sT}, s{g.sT}, s{g.sT2}")
    e(f"v_lshl_add_u32 v{vB[0]}, v{vL}, 4, s{g.sT}")
    e(f"v_xor_b32 v{vB[1]}, 1024, v{vB[0]}")
    vO = V.alloc()
    e(f"s_lshl_b32 s{g.sT}, s{g.sHi}, 16")
    e(f"s_lshl_b32 s{g.sT2}, s{g.sLo}, 7")
    e(f"s_add_u32 s{g.sT}, s{g.sT}, s{g.sT2}")
    e(f"s_add_u32 s{g.sT}, s{g.sT}, s{sX1}")
    e(f"v_lshl_add_u32 v{vO}, v{vS}, 10, s{g.sT}")
    e(f"v_lshrrev_b32 v{vT1}, 5, v{vL}")
    e(f"v_lshl_add_u32 v{vO}, v{vT1}, 4, v{vO}")
    a.wait_lg()
    e("s_barrier")
    stamp(g, 12)
    gemm_splitk(g, "p4", 28, ws, vB, vI, acc, True, (13, 14))
    o8 = V.alloc(8)
    for k in range(2):
        o = o8 + 4*k
        for r in range(4): e(f"v_cvt_pk_bf16_f32 v{o+r}, v{acc+8*k+2*r}, v{acc+8*k+2*r+1}")
        e(f"v_permlane32_swap_b32 v{o}, v{o+2}")
        e(f"v_permlane32_swap_b32 v{o+1}, v{o+3}")
        a.vmem(f"buffer_store_dwordx4 {vr(o,4)}, v{vO}, {sr(g.sOUT,4)}, 0 offen offset:{32*k}", "out")
    e(f"s_lshl_b32 s{g.sT}, s2, 2")
    e(f"s_add_u32 s{g.sT}, s{g.sT}, s{g.sW}")
    e(f"s_min_u32 s{g.sT}, s{g.sT}, 1")
    e(f"s_lshl_b32 s{g.sT}, s{g.sT}, 24")
    e(f"s_add_u32 s{g.sT}, s{g.sT}, {WS_EP}")
    e(f"v_mov_b32 v{vT0}, s{g.sT}")
    e(f"v_mov_b32 v{vT1}, s{g.sNon}")
    e("s_mov_b64 exec, 1")
    a.vmem(f"buffer_store_dword v{vT1}, v{vT0}, {ws}, 0 offen sc1", "ep")
    e("s_mov_b64 exec, -1")

if __name__ == "__main__":
    opt = {}
    out = None
    for x in sys.argv[1:]:
        k, v = x.split("=")
        if k == "out": out = v
        else: opt[k] = int(v)
    txt, g = gen(opt)
    out = out or f"cdna_kernels/{NAME}.s"
    open(out, "w").write(txt)
    print("wrote", out, "lines", txt.count("\n"), "nops", g.a.nnop, "vgpr hi", g.V.hi, "sgpr hi", g.S.hi)
```

```python
import re

TRANS = ("v_exp_f32", "v_log_f32", "v_rcp_f32", "v_rsq_f32", "v_sqrt_f32", "v_sin_f32", "v_cos_f32")

def parse_regs(tok):
    tok = tok.strip()
    tok = re.sub(r"^-", "", tok)
    m = re.match(r"^abs\((.*)\)$", tok)
    if m: tok = m.group(1)
    m = re.match(r"^\|(.*)\|$", tok)
    if m: tok = m.group(1)
    m = re.match(r"^([vas])(\d+)$", tok)
    if m: return [(m.group(1), int(m.group(2)))]
    m = re.match(r"^([vas])\[(\d+):(\d+)\]$", tok)
    if m: return [(m.group(1), i) for i in range(int(m.group(2)), int(m.group(3)) + 1)]
    if tok == "vcc": return [("s", 106), ("s", 107)]
    if tok == "vcc_lo": return [("s", 106)]
    if tok == "vcc_hi": return [("s", 107)]
    if tok == "m0": return [("s", 124)]
    if tok == "exec": return [("s", 126), ("s", 127)]
    if tok == "exec_lo": return [("s", 126)]
    if tok == "exec_hi": return [("s", 127)]
    return []

class Ins:
    __slots__ = ("text", "op", "kind", "w", "r", "c", "passes", "ws", "dpp", "wide_store", "lds_dma", "ab", "d")
    def __init__(self, text):
        self.text = text
        t = text.split(";")[0].strip()
        parts = t.split(None, 1)
        op = parts[0]
        self.op = op
        rest = parts[1] if len(parts) > 1 else ""
        ops = []; cur = ""; depth = 0
        for ch in rest:
            if ch == "[": depth += 1
            if ch == "]": depth -= 1
            if ch == "," and depth == 0: ops.append(cur); cur = ""
            else: cur += ch
        if cur.strip(): ops.append(cur)
        mods = ""
        if ops:
            last = ops[-1].strip().split(None, 1)
            ops[-1] = last[0]
            mods = last[1] if len(last) > 1 else ""
        ops = [o.strip() for o in ops]
        R = [parse_regs(o) for o in ops]
        self.w = set(); self.r = set(); self.c = set(); self.ab = set(); self.d = None
        self.passes = 0; self.ws = 1; self.dpp = ("row_" in mods or "quad_perm" in mods or "_dpp" in op)
        self.wide_store = False; self.lds_dma = False
        flat = lambda L: set(x for l in L for x in l)
        if op == "s_nop":
            self.kind = "nop"; self.ws = int(ops[0], 0) + 1
        elif op.startswith("v_mfma"):
            self.kind = "mfma"
            self.passes = 8 if "32x32" in op else 4
            self.w = flat(R[:1]); self.d = tuple(R[0]); self.ab = flat(R[1:3]); self.c = flat(R[3:4]); self.r = self.ab | self.c
        elif op.startswith("v_cmp"):
            self.kind = "valu"; self.w = flat(R[:1]); self.r = flat(R[1:])
        elif op.startswith("v_permlane"):
            self.kind = "valu"; self.w = flat(R[:2]); self.r = flat(R[:2])
        elif op.startswith("v_"):
            self.kind = "valu"; self.w = flat(R[:1]); self.r = flat(R[1:])
            if op.startswith(("v_fmac", "v_dot2c", "v_pk_fmac")) or self.dpp: self.r |= self.w
            if op.startswith(("v_add_co", "v_sub_co", "v_addc_co", "v_subb_co")): self.w |= flat(R[1:2]); self.r = flat(R[2:])
            if op.startswith("v_cndmask") and len(ops) == 3: self.r |= {("s", 106), ("s", 107)}
        elif op.startswith(("buffer_", "global_")):
            self.kind = "vmem"
            if "lds" in mods.split() or "_lds_" in op:
                self.lds_dma = True; self.r = flat(R) | {("s", 124)}
            elif "store" in op or "atomic" in op:
                self.r = flat(R)
                if "x3" in op or "x4" in op:
                    self.wide_store = True
                    self.c = flat(R[:1]) if op.startswith("buffer_") else flat(R[1:2])
            else:
                self.w = flat(R[:1]); self.r = flat(R[1:])
        elif op.startswith("ds_"):
            self.kind = "ds"
            if "read" in op or "permute" in op or "swizzle" in op:
                self.w = flat(R[:1]); self.r = flat(R[1:])
            else:
                self.r = flat(R)
        elif op.startswith("s_"):
            self.kind = "salu"
            if op.startswith(("s_cmp", "s_cbranch", "s_branch", "s_waitcnt", "s_barrier", "s_endpgm", "s_setprio", "s_sleep", "s_bitcmp")):
                self.r = flat(R)
            else:
                self.w = flat(R[:1]); self.r = flat(R[1:])
                if "saveexec" in op: self.w |= {("s", 126), ("s", 127)}
        else:
            raise ValueError("unknown instr " + text)

def need(p, c):
    n = 0
    pv = {x for x in p.w if x[0] in "va"}
    ps = {x for x in p.w if x[0] == "s"}
    if p.kind == "valu":
        if c.kind == "mfma" and pv & c.r: n = max(n, 2)
        if c.kind == "valu":
            if c.op.startswith("v_permlane") and pv & c.r: n = max(n, 2)
            if c.dpp and pv & c.r: n = max(n, 2)
            if c.op.startswith(("v_readfirstlane", "v_readlane")) and pv & c.r: n = max(n, 1)
            if p.op.startswith(TRANS) and pv & c.r: n = max(n, 1)
            if ps & c.r: n = max(n, 4 if c.op.startswith(("v_readlane", "v_writelane")) else 2)
            if p.op.startswith("v_dot") and pv & (c.r | c.w):
                n = max(n, 3)
        if c.kind in ("vmem",) and ps & c.r: n = max(n, 5)
        if c.kind in ("vmem", "ds", "mfma") and p.op.startswith(TRANS) and pv & c.r: n = max(n, 2)
        if c.kind == "salu" and ps & c.r: n = max(n, 1)
    if p.kind == "mfma":
        big = 12 if p.passes == 8 else 8
        ovl = 10 if p.passes == 8 else 6
        if c.kind == "mfma":
            if pv & c.ab: n = max(n, big)
            if pv & c.c:
                same = (c.passes == p.passes and set(p.d) == c.c and c.op == p.op)
                if not same: n = max(n, ovl)
            if pv & c.w and not (pv & c.c): n = max(n, ovl)
        elif c.kind in ("valu", "vmem", "ds"):
            if pv & (c.r | c.w): n = max(n, big)
            if c.kind == "valu" and (p.c & c.w): n = max(n, 7 if p.passes == 8 else 3)
            if c.kind != "valu" and (p.c & c.w): n = max(n, 7 if p.passes == 8 else 3)
    if p.kind == "salu":
        if ("s", 124) in p.w and c.lds_dma: n = max(n, 1)
    if p.kind == "vmem" and p.wide_store:
        if p.c & c.w: n = max(n, 2)
    return n

class Asm:
    def __init__(self):
        self.items = []
        self.vm = []
        self.lg = []
        self.nnop = 0
        self.bg = []
        self.dcyc = 4; self.trig = ("mfma", "valu"); self.defer = 0
        self.tcyc = 8; self.bg2 = []; self.last_bg2 = 0; self.interval2 = 24
        self.cyc = 0; self.last_bg = 0; self.interval = 80; self.holds = 0; self.execfull = True; self.scc = False; self.tail = []; self.filler = None; self.alt = 0; self.altmode = 0
    def raw(self, s): self.items.append(s)
    def label(self, l): self.items.append(l + ":")
    def comment(self, s): self.items.append("  ; " + s)
    def e(self, text):
        for line in text.strip().split("\n"):
            line = line.strip()
            if not line: continue
            ins = Ins(line)
            dist = 0; req = 0
            for p in reversed(self.items):
                if isinstance(p, str): continue
                n = need(p, ins)
                if n - dist > req: req = n - dist
                dist += p.ws
                if dist >= 12: break
            if req > 0:
                self.items.append(Ins(f"s_nop {req-1}")); self.nnop += req; self.cyc += 4 * req
            self.items.append(ins)
            self.cyc += (ins.passes * 4 if ins.kind == "mfma" else self.tcyc if ins.op.startswith(TRANS) else self.dcyc if ins.kind == "ds" else 4 * ins.ws)
            if ("s", 126) in ins.w or ("s", 127) in ins.w:
                self.execfull = line.split(";")[0].strip().endswith("exec, -1")
            if ins.op.startswith(("s_cmp", "s_bitcmp")): self.scc = True
            elif ins.op.startswith(("s_cselect", "s_cbranch_scc", "s_addc", "s_cmov")): self.scc = False
            if (self.bg or self.filler) and not self.holds and self.execfull and not self.scc and ins.kind in self.trig and not ins.op.startswith(("v_cmp", "s_wait", "s_cbr", "s_bar", "s_bra")) \
               and self.cyc - self.last_bg >= self.interval:
                if self.filler and (not self.bg or self.alt):
                    self.bg.insert(0, self.filler); self.alt = 0
                else: self.alt = self.altmode
                self.run_bg(1)
            elif self.bg2 and not self.holds and self.execfull and not self.scc and ins.kind in ("mfma", "valu") and not ins.op.startswith("v_cmp") \
               and self.cyc - self.last_bg2 >= self.interval2:
                self.holds += 1; self.bg2.pop(0)(); self.holds -= 1; self.last_bg2 = self.cyc
    def run_bg(self, n=None):
        self.holds += 1
        while self.bg and (n is None or n > 0):
            f = self.bg.pop(0); n0 = len(self.items); f()
            if n is not None and (len(self.items) > n0 or not getattr(self, "skipnop", 0)): n -= 1
        self.holds -= 1
        self.last_bg = self.cyc
    def hold(self): self.holds += 1
    def unhold(self): self.holds -= 1
    def vmem(self, text, tag=None):
        self.e(text); self.vm.append(tag)
        assert len(self.vm) <= 63, "vmcnt overflow"
    def ds(self, text, tag=None):
        self.lg.append(tag); self.e(text)
    def _cnt(self, lst, tags):
        if not isinstance(tags, (list, set)): tags = [tags]
        idx = -1
        for i, t in enumerate(lst):
            if t in tags: idx = i
        return idx
    def wait_vm(self, tags=None):
        if tags is None:
            self.e("s_waitcnt vmcnt(0)"); self.vm = []; return
        idx = self._cnt(self.vm, tags)
        if idx < 0: return
        n = len(self.vm) - 1 - idx
        self.e(f"s_waitcnt vmcnt({n})"); self.vm = self.vm[idx + 1:]
    def wait_lg(self, tags=None):
        if tags is None:
            self.e("s_waitcnt lgkmcnt(0)"); self.lg = []; return
        idx = self._cnt(self.lg, tags)
        if idx < 0: return
        n = len(self.lg) - 1 - idx
        if n > 15: n = 15; idx = len(self.lg) - 1 - n
        self.e(f"s_waitcnt lgkmcnt({n})"); self.lg = self.lg[idx + 1:]
    def text(self):
        out = []
        for it in self.items:
            out.append(it if isinstance(it, str) else "  " + it.text)
        return "\n".join(out) + "\n"

class Regs:
    def __init__(self, n, start=0):
        self.free = [True] * n
        for i in range(start): self.free[i] = False
        self.hi = start
    def alloc(self, n=1, align=None):
        if align is None: align = 1 if n == 1 else 2
        i = 0
        while True:
            if i + n > len(self.free): raise RuntimeError("out of regs")
            if all(self.free[i:i + n]): break
            i += align
        for k in range(i, i + n): self.free[k] = False
        self.hi = max(self.hi, i + n)
        return i
    def release(self, i, n=1):
        for k in range(i, i + n):
            assert not self.free[k]; self.free[k] = True

def vr(i, n=1, p="v"):
    return f"{p}{i}" if n == 1 else f"{p}[{i}:{i+n-1}]"
def ar(i, n=1): return vr(i, n, "a")
def sr(i, n=1): return vr(i, n, "s")
```

```python
import sys, os, struct, math, copy
sys.path.insert(0, os.path.dirname(os.path.abspath(__file__)))
from asm import *

NAME = "sequential_preLN__sliding_local_dilated__mixer_token_mlp__prompt"
KN = NAME + "_kernel"

WS_OF = 0
WS_HH = 2 << 20
WS_UF = 4 << 20
WS_ST = 6 << 20
WS_FL = (6 << 20) + (512 << 10)
WS_EP = WS_FL + 4096
WS_TS = 7 << 20
WS_SIZE = 8 << 20

def DS(i): return 16384 * i
def RB(r): return 32768 * (r + 1)
L_ONE = 16384; P_OFF = 16384; L_HL = 24576; N_OFF = 18944; L_XR = 24576
LDS_BYTES = 163840
SPIN = 30000
SCL = 30
TMASK = 0x40004000
SC2 = 84
TMASK2 = 0x60006000

def f32bits(x): return struct.unpack("<I", struct.pack("<f", x))[0]

class G:
    pass

class RegsT(Regs):
    def alloc(self, n=1, align=None):
        if n < 16: return Regs.alloc(self, n, align)
        i = (len(self.free) - n) & ~3
        while True:
            if i < 0: raise RuntimeError("out of regs")
            if all(self.free[i:i + n]): break
            i -= 4
        for k in range(i, i + n): self.free[k] = False
        return i

def newlabel(g, p):
    g.nl += 1
    return f"L_{p}{g.nl}"

def stamp(g, idx, force=False):
    if not g.opt.get("ts"): return
    if g.opt.get("tsl") and 4 <= idx <= 10 and not force: return
    if g.opt.get("tsp") and 3 <= idx <= 10 and not force: return
    if idx == 0: return
    if g.opt.get("tse") and idx == 8 and not force: return
    if g.opt.get("tsx") and 9 <= idx <= 13 and not force: return
    if g.opt.get("tsy") and 11 <= idx <= 13 and not force: return
    a = g.a
    a.hold()
    if not hasattr(g, "sTSt"):
        g.sTSt = g.S.alloc(2, 2); g.keepv.append(g.vTS)
        a.e(f"v_mov_b32 v{g.vTS}, 0")
    a.e(f"s_memrealtime {sr(g.sTSt, 2)}" if g.opt.get("ts") == 2 else f"s_memtime {sr(g.sTSt, 2)}")
    a.lg.append("ts"); a.lg.append("ts")
    a.wait_lg()
    a.e(f"v_writelane_b32 v{g.vTS}, s{g.sTSt}, {idx}")
    a.unhold()

def finish_ts(g):
    if not g.opt.get("ts"): return
    a = g.a; e = a.e; vA = g.vT[0]
    if g.opt.get("hwid"): e(f"s_getreg_b32 s{g.sSpin}, hwreg(HW_REG_HW_ID)")
    e(f"v_writelane_b32 v{g.vTS}, s{g.sSpin}, 15")
    e(f"s_lshl_b32 s{g.sT}, s2, 2")
    e(f"s_add_u32 s{g.sT}, s{g.sT}, s{g.sW}")
    e(f"s_lshl_b32 s{g.sT}, s{g.sT}, 6")
    e(f"s_add_u32 s{g.sT}, s{g.sT}, {WS_TS}")
    e(f"v_lshl_add_u32 v{vA}, v{g.vN}, 2, s{g.sT}")
    e(f"v_lshl_add_u32 v{vA}, v{g.vG}, 16, v{vA}")
    e("s_mov_b64 exec, 0xffffffff")
    a.vmem(f"buffer_store_dword v{g.vTS}, v{vA}, {sr(g.sWS,4)}, 0 offen", "ts")
    e("s_mov_b64 exec, -1")

class Op:
    def __init__(self, fn, kind="s", grp=None, first=False): self.fn = fn; self.kind = kind; self.grp = grp; self.first = first
    def __call__(self): self.fn()

class En:
    def __init__(self, it, slot): self.it = it; self.slot = slot; self.sync = False; self.done = [False, False]

class Stager:
    def __init__(self, g):
        self.g = g
        oj = g.opt.get("oj", 1234567)
        o1 = [int(c) for c in f"{oj:08d}"]; assert sorted(o1) == list(range(8))
        self.items = [("w1", t) for t in o1] + [("w2", t) for t in range(7)]
        self.busy = set()
        self.nx = 0; self.part = 0; self.cur = None; self.dpart = 0; self.dc = None
        self.free = []; self.fl = []; self.nofree = set(); self.ndrained = 0; self.dlim = {"w1": 16, "w2": 0}
        self.slot_of = {}; self.dlog = []; self.c1 = False
    def release(self, slots): self.free += list(slots)
    def can_issue(self): return self.nx < len(self.items) and (self.part or self.free)
    def issue_op(self):
        g = self.g; a = g.a
        if not self.can_issue(): return
        it = self.items[self.nx]; k, j = it; p = self.part
        if p == 0:
            self.cur = self.free.pop(0); self.slot_of[it] = self.cur
            a.e(f"s_add_u32 m0, s{g.sW4k}, {DS(self.cur)}")
        elif p == 1:
            if k == "w1":
                if j >= 4: a.e(f"s_sub_u32 s{g.sSO}, {385*3584}, s{g.sG + 7 - j}")
            else: a.e(f"s_mov_b32 s{g.sSO}, {64*j*4096}")
        else:
            so = g.sG + j if k == "w1" and j < 4 else g.sSO
            a.vmem(f"buffer_load_dwordx4 v{g.vD[k] + p - 2}, {sr(g.sW1 if k == 'w1' else g.sW2, 4)}, s{so} offen offset:{1024*(p-2)}{' nt' if g.opt.get('wnt', 0) & (1 if k == 'w1' else 2) else ''} lds", it)
        if p == 5: self.fl.append(En(it, self.cur)); self.nx += 1; self.part = 0
        else: self.part += 1
    def issue(self, n):
        for _ in range(6*n): self.issue_op()
    def finish(self):
        while self.part: self.issue_op()
        while self.dpart: self.drain_op()
    def issue_ops(self, n, fuse=False):
        L = []
        for _ in range(n):
            o = {"on": False}
            def first(o=o, k=3 if fuse else 1):
                o["on"] = bool(self.part == 0 and self.can_issue())
                if o["on"]:
                    for _ in range(k): self.issue_op()
            def rest(o=o):
                if o["on"] and self.part: self.issue_op()
            if fuse: L += [Op(first, "v", "st", True)] + [Op(rest, "v", "st") for _ in range(3)]
            else: L += [Op(first, "s", "st", True), Op(rest, "s", "st")] + [Op(rest, "v", "st") for _ in range(4)]
        return L
    def age(self, en):
        a = self.g.a; i = a._cnt(a.vm, en.it)
        return 99 if i < 0 else len(a.vm) - 1 - i
    def pick(self, lag=0, want=None):
        for en in self.fl:
            k, J = en.it
            for c in range(2):
                j = 2*J + c
                if en.done[c] or j >= self.dlim[k] or j in self.busy or (c and not (en.sync and self.c1)) or self.age(en) < lag: continue
                if want is not None and want != (k, j): continue
                return en, c
        return None
    def can_drain(self, lag=0): return bool(self.dpart or self.pick(lag))
    def drain_op(self, nr=2, lag=0, want=None):
        g = self.g; a = g.a
        if self.dpart == 0:
            self.dc = self.pick(lag, want)
            if not self.dc: return
            a.wait_vm(self.dc[0].it)
        en, c = self.dc; k, J = en.it; j = 2*J + c
        base = DS(en.slot); bi = base >> 16
        for _ in range(min(nr, 8 - self.dpart)):
            d = self.dpart; u = d >> 2; part = (d >> 1) & 1; h = d & 1
            a.ds(f"ds_read_b64_tr_b16 {ar(((2*j+u)*2+part)*4 + 2*h, 2)}, v{(g.vTB if c else g.vTA)[bi][part]} offset:{(base & 0xffff) + u*2048 + h*1024}", ("tr", (k, j)))
            self.dpart += 1
        if self.dpart == 8:
            self.dpart = 0; en.done[c] = True; self.ndrained += 1; self.dlog.append((en.it, c))
    def drain(self, n=1):
        for _ in range(n):
            for _ in range(4): self.drain_op()
    def need(self, k, j):
        while self.dpart: self.drain_op(8)
        if ((k, j >> 1), j & 1) in self.dlog: return
        assert self.pick(0, (k, j)), ("cannot drain", k, j)
        self.drain_op(8, 0, (k, j))
    def drain_ops(self, n, nr=2):
        L = []
        for _ in range(n):
            L += [Op(lambda: self.drain_op(nr), "s", "st", p == 0) for p in range(8 // nr)]
        return L
    def bar(self, n=0):
        a = self.g.a
        a.hold()
        for en in self.fl:
            if not en.sync and a._cnt(a.vm, en.it) >= 0 and n > 0: a.wait_vm(en.it); n -= 1
        for en in self.fl:
            if a._cnt(a.vm, en.it) < 0: en.sync = True
        done = [en for en in self.fl if all(en.done)]
        a.wait_lg([("tr", (en.it[0], 2*en.it[1] + c)) for en in done for c in range(2)])
        a.e("s_barrier")
        a.unhold()
        self.fl = [en for en in self.fl if en not in done]
        self.free += [en.slot for en in done if en.slot not in self.nofree]
    def tick(self, ilim=15, dmax=30, lag=8, nr=4):
        if self.part or (self.nx < ilim and self.can_issue()):
            if self.part == 0: self.issue_op(); self.issue_op()
            self.issue_op()
        if self.dpart or self.ndrained < dmax: self.drain_op(nr, lag)
    def upto(self, n):
        while self.nx < n and self.can_issue(): self.issue(1)
    def take(self, slots):
        self.nofree |= set(slots); self.free = [x for x in self.free if x not in self.nofree]
    def state(self): return f"issued {self.nx} drained {self.ndrained} free {self.free} fl {[(en.it[1], en.slot, int(en.sync), int(en.done[0]), int(en.done[1])) for en in self.fl]}"

def pace(g, ilim, dmax, iv, lag=8, nr=4):
    a = g.a
    if not iv: a.filler = None; a.trig = ("mfma", "valu"); a.dcyc = 4; return
    a.filler = lambda: g.st.tick(ilim, dmax, lag, nr)
    a.interval = iv; a.last_bg = a.cyc - iv; a.trig = ("mfma", "valu", "ds", "salu"); a.dcyc = g.opt.get("dcyc", 8)

def spin_loop(g, name, body):
    a = g.a; e = a.e
    a.hold()
    lab = newlabel(g, name)
    a.label(lab)
    body()
    e(f"s_cbranch_vccz {lab}_ok")
    e(f"s_add_u32 s{g.sSpin}, s{g.sSpin}, 1")
    e(f"s_cmp_lt_u32 s{g.sSpin}, {SPIN}")
    e(f"s_cbranch_scc1 {lab}")
    a.label(lab + "_ok")
    a.unhold()

def tag_check(g, regs, vtmp, emit):
    if g.t64:
        for r in regs: emit(f"v_lshl_add_u64 {vr(r,2)}, {vr(r,2)}, 0, {vr(g.vTn,2)}")
        d = [r + o for r in regs for o in range(2)]
        if len(d) > 2:
            emit(f"v_or3_b32 v{vtmp}, v{d[0]}, v{d[1]}, v{d[2]}")
            for i in range(3, len(d) - 1, 2): emit(f"v_or3_b32 v{vtmp}, v{vtmp}, v{d[i]}, v{d[i+1]}")
        emit(f"v_bitop3_b32 v{vtmp}, v{vtmp if len(d) > 2 else d[0]}, v{d[-1]}, s{g.sTM} bitop3:0xa8")
        emit(f"v_cmp_ne_u32 vcc, 0, v{vtmp}")
        return
    d = [r + o for r in regs for o in range(4)]
    for i, r in enumerate(d): emit(f"v_xor_b32 v{r}, v{r}, v{g.vTg + (i & 3)}")
    emit(f"v_or3_b32 v{vtmp}, v{d[0]}, v{d[1]}, v{d[2]}")
    for i in range(3, len(d) - 1, 2): emit(f"v_or3_b32 v{vtmp}, v{vtmp}, v{d[i]}, v{d[i+1]}")
    emit(f"v_bitop3_b32 v{vtmp}, v{vtmp}, v{d[-1]}, s{g.sTM} bitop3:0xa8")
    emit(f"v_cmp_ne_u32 vcc, 0, v{vtmp}")

def verify_tail(g, regs, vtmp, reload_lines, hot=False):
    a = g.a; e = a.e
    lab = newlabel(g, "sl")
    e(f"s_cbranch_vccnz {lab}")
    a.label(lab + "_b")
    T = [lab + ":"] + ["  " + x for x in reload_lines] + ["  s_waitcnt vmcnt(0)"]
    tag_check(g, regs, vtmp, lambda x: T.append("  " + x))
    T += [f"  s_cbranch_vccz {lab}_b", f"  s_add_u32 s{g.sSpin}, s{g.sSpin}, 1", f"  s_cmp_lt_u32 s{g.sSpin}, {SPIN}",
          f"  s_cbranch_scc1 {lab}", f"  s_branch {lab}_b"]
    if hot: g.hot += T
    else: a.tail += T

def verify(g, regs, vtmp, reload_lines, hot=False):
    g.a.hold()
    tag_check(g, regs, vtmp, g.a.e)
    verify_tail(g, regs, vtmp, reload_lines, hot)
    g.a.unhold()

def store_sel(g, lines, tag):
    a = g.a; e = a.e
    if g.opt.get("osc") == 1 or (g.opt.get("osc") == 2 and tag == "ost") or (g.opt.get("osc") == 3 and tag == "px" and g.inP4):
        for x in lines: a.vmem(x + " sc1", tag)
        return
    a.hold()
    l1 = newlabel(g, "ss")
    e(f"s_cmp_eq_u32 s{g.sSame}, 0")
    e(f"s_cbranch_scc0 {l1}")
    for x in lines: a.vmem(x, tag)
    a.label(l1 + "_e")
    a.unhold()
    a.tail += [l1 + ":"] + ["  " + x + " sc1" for x in lines] + [f"  s_branch {l1}_e"]

def gen(opt):
    a = Asm(); a.skipnop = 1; V = RegsT(256, 1); S = Regs(102, 3)
    g = G(); g.a = a; g.V = V; g.S = S; g.opt = opt; g.nl = 0; g.t64 = False; g.hot = []
    e = a.e
    sX = S.alloc(4, 4); sWQ = S.alloc(4, 4); sWO = S.alloc(4, 4); sW1 = S.alloc(4, 4); sW2 = S.alloc(4, 4)
    sWS = S.alloc(4, 4); sOUT = S.alloc(4, 4)
    sB1 = S.alloc(2); sB2 = S.alloc(2); sPC = S.alloc(2)
    g.sX, g.sWQ, g.sWO, g.sW1, g.sW2, g.sWS, g.sOUT, g.sB1, g.sB2 = sX, sWQ, sWO, sW1, sW2, sWS, sOUT, sB1, sB2
    if opt.get("ts") and not opt.get("pad"):
        e("s_memrealtime s[100:101]" if opt["ts"] == 2 else "s_memtime s[100:101]")
        S.free[100] = S.free[101] = False
    if opt.get("tsp") or opt.get("tsq") or opt.get("tsu") or opt.get("tsz"):
        for i in range(84, 96): S.free[i] = False
    if opt.get("pad"):
        e("s_memrealtime s[100:101]")
        S.free[100] = S.free[101] = False
    e(f"s_cmp_ge_u32 s2, 256")
    e(f"s_cbranch_scc1 L_end")
    e(f"s_load_dwordx2 {sr(sX,2)}, s[0:1], 0")
    e(f"s_load_dwordx2 {sr(sWQ,2)}, s[0:1], 8")
    e(f"s_load_dwordx2 {sr(sWS,2)}, s[0:1], 80")
    e(f"s_load_dwordx2 {sr(sWO,2)}, s[0:1], 16")
    if opt.get("kw"): e("s_waitcnt lgkmcnt(0)")
    def kload2():
        e(f"s_load_dwordx2 {sr(sW1,2)}, s[0:1], 32")
        e(f"s_load_dwordx2 {sr(sW2,2)}, s[0:1], 48")
        e(f"s_load_dwordx2 {sr(sOUT,2)}, s[0:1], 64")
        e(f"s_load_dwordx2 s[96:97], s[0:1], 48")
        e(f"s_load_dwordx2 {sr(sB1,2)}, s[0:1], 40")
        e(f"s_load_dwordx2 {sr(sB2,2)}, s[0:1], 56")
    g.kload2 = kload2
    if not opt.get("kl", 1): kload2()
    e(f"s_getpc_b64 {sr(sPC,2)}")
    a.label("L_pc")
    vT0 = V.alloc(); vT1 = V.alloc(); vT2 = V.alloc(); vT3 = V.alloc()
    g.vT = [vT0, vT1, vT2, vT3]
    vJ = V.alloc(); g.vJ = vJ
    e(f"v_and_b32 v{vT0}, 63, v0")
    e(f"v_lshrrev_b32 v{vT1}, 6, v0")
    e(f"s_bfe_u32 s3, s2, 0x40003")
    e(f"v_lshl_add_u32 v{vT0}, v{vT0}, 2, v{vT1}")
    e(f"s_lshl_b32 s3, s3, 7")
    e(f"v_lshl_add_u32 v{vT0}, v{vT0}, 11, s3")
    CPS = [opt[k] for k in ("cpa", "cpb", "cpc") if opt.get(k, -1) >= 0]
    e(f"v_min_u32 v{vT1}, L_cold-L_pc, v{vT0}")
    a.vmem(f"global_load_dword v{vJ}, v{vT1}, {sr(sPC,2)}", "pf")
    S.release(sPC, 2)
    def cp(k):
        if k not in CPS: return
        a.hold()
        sP = S.alloc(2, 2)
        e(f"s_bfe_u32 s{sP}, s2, 0x40003")
        e(f"v_lshl_add_u32 v{vT0}, v{g.vL}, 2, s{g.sW}")
        e(f"s_lshl_b32 s{sP}, s{sP}, 7")
        e(f"v_lshl_add_u32 v{vT0}, v{vT0}, 11, s{sP}")
        e(f"s_getpc_b64 {sr(sP,2)}")
        a.label(f"L_pc{k}")
        e(f"v_min_u32 v{vT0}, {'L_loopB' if opt.get('cpe', 1) else 'L_cold'}-L_pc{k}, v{vT0}")
        a.vmem(f"global_load_dword v{vJ}, v{vT0}, {sr(sP,2)}", "pf")
        S.release(sP, 2)
        a.unhold()
    g.cp = cp
    vL = V.alloc(); vN = V.alloc(); vG = V.alloc()
    g.vL, g.vN, g.vG = vL, vN, vG
    if opt.get("ts"): g.vTS = V.alloc()
    sW = S.alloc(); sW1k = S.alloc(); g.sW, g.sW1k = sW, sW1k
    e(f"v_lshrrev_b32 v{vT1}, 6, v0")
    e(f"v_and_b32 v{vL}, 63, v0")
    e(f"v_readfirstlane_b32 s{sW}, v{vT1}")
    e(f"v_and_b32 v{vN}, 15, v0")
    e(f"v_bfe_u32 v{vG}, v0, 4, 2")
    sHi = S.alloc(); sLo = S.alloc(); sD3 = S.alloc(); sFt = S.alloc(); sT = S.alloc(); sT2 = S.alloc()
    g.sHi, g.sLo, g.sD3, g.sFt, g.sT, g.sT2 = sHi, sLo, sD3, sFt, sT, sT2
    now = opt.get("now", 0)
    for s_, n in ((sX, 2048*1024), (sWQ, 512*3072), (sWO, 0 if now & 4 else 512*1024)):
        e(f"s_mov_b32 s{s_+2}, {n}")
        e(f"s_mov_b32 s{s_+3}, 0x20000")
    g.sWI = 96; g.vIW = V.alloc()
    for i in range(96, 100): S.free[i] = False
    g.sSpin = S.alloc()
    def late():
        for s_, n in ((sW2, 0 if now & 2 else 1792*4096), (sWS, WS_SIZE), (sOUT, 2048*1024)):
            e(f"s_mov_b32 s{s_+2}, {n}")
            e(f"s_mov_b32 s{s_+3}, 0x20000")
        e(f"s_cmp_lt_u32 s2, 224")
        if opt.get("m3", 0) == 1: e(f"s_mov_b32 s{sW1+2}, {0 if now & 1 else 2048*3584}")
        else: e(f"s_cselect_b32 s{sW1+2}, {0 if now & 1 else 2048*3584}, 0")
        e(f"s_cselect_b32 s{g.sWI+2}, 0, {1792*4096}")
        e(f"s_mov_b32 s{sW1+3}, 0x20000")
        e(f"s_mov_b32 s{g.sWI+3}, 0x20000")
        e(f"s_bfe_u32 s{sT}, s2, 0x20001")
        e(f"s_mul_i32 s{sFt}, s{sT}, 7")
        if opt.get("m3", 0):
            e(f"s_and_b32 s{sT}, s{sHi}, 7")
            e(f"s_cmp_eq_u32 s{sT}, 7")
            e(f"s_cselect_b32 s{sT}, 3, s{sT}")
            e(f"s_add_u32 s{sFt}, s{sFt}, s{sT}")
            e(f"s_and_b32 s{sD3}, s{sHi}, 4")
            e(f"s_xor_b32 s{sD3}, s{sD3}, s{sLo}")
        else:
            e(f"s_lshr_b32 s{sT}, s2, 5")
            e(f"s_add_u32 s{sFt}, s{sFt}, s{sT}")
            e(f"s_and_b32 s{sD3}, s{sHi}, 4")
            e(f"s_and_b32 s{sT}, s{sLo}, 3")
            e(f"s_or_b32 s{sD3}, s{sD3}, s{sT}")
        e(f"s_mov_b32 s{g.sSpin}, 0")
        e(f"s_and_b32 s{sT}, s{sLo}, 1")
        e(f"s_lshr_b32 s{g.sKq}, s{sW}, 1")
        e(f"s_lshl1_add_u32 s{g.sKq}, s{sT}, s{g.sKq}")
    g.late = late
    g.iA = len(a.items)
    e(f"s_lshl_b32 s{sW1k}, s{sW}, 10")
    g.sW4k = S.alloc(); e(f"s_lshl_b32 s{g.sW4k}, s{sW}, 12")
    e(f"s_lshr_b32 s{sT2}, s2, 6")
    e(f"s_and_b32 s{sHi}, s2, 7")
    e(f"s_lshl_b32 s{sHi}, s{sHi}, 2")
    e(f"s_add_u32 s{sHi}, s{sHi}, s{sT2}")
    e(f"s_bfe_u32 s{sLo}, s2, 0x30003")
    g.sSO = S.alloc(); g.sNon = S.alloc(); g.sSame = S.alloc(); g.sKq = S.alloc()
    g.vOa = V.alloc(); g.vSa = V.alloc()
    g.vFl = V.alloc(); g.vFs = V.alloc(); g.vNon = V.alloc()
    g.vD = {"w1": V.alloc(4, 1)}
    g.vTA = [[V.alloc(), V.alloc()] for _ in range(3)]
    g.vTg = V.alloc(4, 2); g.vWq = [V.alloc() for _ in range(4)]
    g.keepv = [g.vOa, g.vSa, g.vIW] + g.vWq + list(range(g.vTg, g.vTg + 4)) + list(range(g.vD["w1"], g.vD["w1"] + 4)) + [x for p in g.vTA for x in p]
    g.st = Stager(g)
    g.NR = opt.get("nr", 4); g.WX = 2 if g.NR == 3 else 0
    if g.NR == 3: opt["wor"] = 2
    g.L_WO = RB(opt.get("wor", 0))
    phase1(g)
    if opt.get("stop") == 1:
        finish_ts(g); e("s_endpgm")
    phase2(g)
    phase34(g)
    finish_ts(g)
    if opt.get("pad"):
        e(f"v_readlane_b32 s4, v{g.vTS}, {opt.get('padk', 14)}")
        e("s_sub_u32 s4, s4, s100")
        e("s_min_u32 s4, s4, 6000")
        e(f"s_mul_i32 s4, s4, {opt.get('amp', 0)}")
        e(f"s_add_u32 s4, s4, {opt['pad']}")
        a.label("L_pad")
        e("s_sleep 1")
        e("s_memrealtime s[6:7]")
        e("s_waitcnt lgkmcnt(0)")
        e("s_sub_u32 s6, s6, s100")
        e("s_cmp_lt_u32 s6, s4")
        e("s_cbranch_scc1 L_pad")
    e("s_endpgm")
    if opt.get("tsq"):
        wl = lambda it: not isinstance(it, str) and it.text.startswith(f"v_writelane_b32 v{g.vTS},")
        i0 = next(i for i, it in enumerate(a.items) if wl(it) and it.text.endswith(f", {opt['tsq']}")) + 1
        i1 = next(i for i in range(i0, len(a.items)) if wl(a.items[i]))
        last = a.items[i1].text.endswith(", 15")
        n = i1 - i0 - (0 if last else 2); q0 = opt.get("tq0", 0); qn = opt.get("tqn", n - q0)
        for k in range(6): a.items.insert(i1 + 1, Ins(f"v_writelane_b32 v{g.vTS}, s{84+2*k}, {16+k}"))
        if last: a.items.insert(i1 + 1, Ins("s_waitcnt lgkmcnt(0)"))
        for k in reversed(range(6)):
            p = i0 + q0 + (k + 1) * qn // 7 if not last else i0 + q0 + (k + 1) * qn // 6
            a.items.insert(p, Ins(f"s_memtime s[{84+2*k}:{85+2*k}]"))
            a.items.insert(p, f"  ; TQ{k} +{p - i0}")
    a.items += g.loopB
    a.items += g.idle_items
    for t in g.hot: a.raw(t)
    a.label("L_cold")
    for t in a.tail: a.raw(t)
    a.label("L_end")
    e("s_endpgm")
    hdr = f"; @launch grid=(256,1,1) block=(256,1,1) lds={LDS_BYTES}\n"
    out = hdr + f""".amdgcn_target "amdgcn-amd-amdhsa--gfx950"
.text
.globl {KN}
.p2align 8
.type {KN},@function
{KN}:
""" + a.text() + f""".section .rodata,"a"
.p2align 6
.amdhsa_kernel {KN}
  .amdhsa_next_free_vgpr 512
  .amdhsa_next_free_sgpr 102
  .amdhsa_accum_offset 256
  .amdhsa_group_segment_fixed_size 0
  .amdhsa_kernarg_size 88
  .amdhsa_user_sgpr_count 2
  .amdhsa_user_sgpr_kernarg_segment_ptr 1
  .amdhsa_system_sgpr_workgroup_id_x 1
.end_amdhsa_kernel
"""
    return out, g

def tr_base(g, v):
    e = g.a.e; vT1 = g.vT[1]
    e(f"v_lshrrev_b32 v{v}, 1, v{g.vG}")
    e(f"v_lshrrev_b32 v{vT1}, 2, v{g.vN}")
    e(f"v_lshl_add_u32 v{v}, v{v}, 2, v{vT1}")
    e(f"v_lshlrev_b32 v{v}, 7, v{v}")
    e(f"v_and_b32 v{vT1}, 1, v{g.vG}")
    e(f"v_lshl_add_u32 v{v}, v{vT1}, 5, v{v}")
    e(f"v_and_b32 v{vT1}, 3, v{g.vN}")
    e(f"v_lshl_add_u32 v{v}, v{vT1}, 3, v{v}")
    e(f"v_lshrrev_b32 v{vT1}, 3, v{g.vN}")
    e(f"v_lshl_add_u32 v{v}, v{vT1}, 6, v{v}")

def dma_lane(g, v):
    e = g.a.e; vT1 = g.vT[1]
    e(f"v_and_b32 v{v}, 7, v{g.vL}")
    e(f"v_and_b32 v{vT1}, 1, v{g.vG}")
    e(f"v_lshlrev_b32 v{vT1}, 2, v{vT1}")
    e(f"v_xor_b32 v{v}, v{v}, v{vT1}")

def handoff_setup(g):
    a, V, S = g.a, g.V, g.S; e = a.e
    vT0, vT1, vT2, vT3 = g.vT; sT = g.sT
    sU = S.alloc()
    ws = sr(g.sWS, 4)
    g.sO2 = S.alloc()
    e(f"s_lshl_b32 s{sT}, s{g.sHi}, 16")
    e(f"s_lshl_b32 s{sU}, s{g.sLo}, 11")
    e(f"s_add_u32 s{sT}, s{sT}, s{sU}")
    e(f"s_lshl_b32 s{sU}, s{g.sW}, 9")
    e(f"s_add_u32 s{sT}, s{sT}, s{sU}")
    e(f"s_mov_b32 s{g.sO2}, 32768")
    e(f"v_and_b32 v{vT0}, 31, v{g.vL}")
    e(f"v_lshl_add_u32 v{g.vOa}, v{vT0}, 4, s{sT}")
    e(f"v_lshrrev_b32 v{vT0}, 5, v{g.vL}")
    e(f"v_lshl_add_u32 v{g.vOa}, v{vT0}, 14, v{g.vOa}")
    e(f"s_lshl_b32 s{sT}, s{g.sHi}, 2")
    e(f"s_add_u32 s{sT}, s{sT}, s{g.sW}")
    e(f"s_lshl_b32 s{sT}, s{sT}, 11")
    g.sStb = S.alloc()
    e(f"s_add_u32 s{g.sStb}, s{sT}, {WS_ST}")
    e(f"s_lshl_b32 s{sU}, s{g.sLo}, 8")
    e(f"s_add_u32 s{sT}, s{g.sStb}, s{sU}")
    e(f"v_lshl_add_u32 v{g.vSa}, v{g.vN}, 4, s{sT}")
    g.sT2i = S.alloc()
    e(f"s_lshr_b32 s{g.sT2i}, s{g.sHi}, 2")
    e(f"s_lshl_b32 s{g.sT2i}, s{g.sT2i}, 4")
    e(f"s_lshr_b32 s{sT}, s{g.sW}, 1")
    e(f"s_lshl_b32 s{sT}, s{sT}, 3")
    e(f"s_add_u32 s{g.sT2i}, s{g.sT2i}, s{sT}")
    e(f"s_and_b32 s{sT}, s{g.sHi}, 3")
    e(f"s_lshl_b32 s{sT}, s{sT}, 1")
    e(f"s_add_u32 s{g.sT2i}, s{g.sT2i}, s{sT}")
    e(f"s_and_b32 s{sT}, s{g.sW}, 1")
    e(f"s_add_u32 s{g.sT2i}, s{g.sT2i}, s{sT}")
    g.prd = [
        Op(lambda: a.vmem(f"buffer_load_dword v{g.vJ}, v{g.vOa}, {ws}, 0 offen", "pf"), "v"),
        Op(lambda: a.vmem(f"buffer_load_dword v{g.vJ}, v{g.vOa}, {ws}, s{g.sO2} offen", "pf"), "v"),
        Op(lambda: a.vmem(f"buffer_load_dword v{g.vJ}, v{g.vSa}, {ws}, 0 offen", "pf"), "v"),
    ]
    g.vFa = V.alloc()
    e(f"s_and_b32 s{sT}, s2, 7")
    e(f"s_lshl_b32 s{sT}, s{sT}, 7")
    e(f"s_add_u32 s{sT}, s{sT}, {WS_FL}")
    e(f"v_and_b32 v{vT0}, 31, v{g.vL}")
    e(f"v_lshl_add_u32 v{g.vFa}, v{vT0}, 2, s{sT}")
    e(f"s_lshr_b32 s{sU}, s2, 3")
    e(f"s_lshl_b32 s{sU}, s{sU}, 2")
    e(f"s_add_u32 s{sT}, s{sT}, s{sU}")
    e(f"v_lshl_add_u32 v{g.vFs}, v0, 23, s{sT}")
    dma_lane(g, vT0)
    e(f"v_lshrrev_b32 v{vT1}, 3, v{g.vL}")
    e(f"s_and_b32 s{sU}, s{g.sW}, 1")
    e(f"s_lshl3_add_u32 s{sT}, s{g.sKq}, s{sU}")
    e(f"s_mul_i32 s{sT}, s{sT}, {64*3584}")
    e(f"s_lshl_b32 s{sU}, s{g.sFt}, 7")
    e(f"s_add_u32 s{sT}, s{sT}, s{sU}")
    e(f"v_lshl_add_u32 v{vT2}, v{vT0}, 4, s{sT}")
    e(f"v_mul_u32_u24 v{vT1}, 7168, v{vT1}")
    e(f"v_add_u32 v{g.vD['w1']}, v{vT1}, v{vT2}")
    for p in range(1, 4): e(f"v_add_u32 v{g.vD['w1']+p}, {p*(16*3584 - 1024)}, v{g.vD['w1']}")
    tr_base(g, vT0)
    e(f"s_lshr_b32 s{sT}, s{g.sW}, 1")
    e(f"s_lshl_b32 s{sT}, s{sT}, 6")
    e(f"v_xor_b32 v{vT0}, s{sT}, v{vT0}")
    e(f"v_add_u32 v{g.vTA[0][0]}, s{g.sW4k}, v{vT0}")
    e(f"v_xor_b32 v{g.vTA[0][1]}, 64, v{g.vTA[0][0]}")
    for b in (1, 2):
        for p in range(2): e(f"v_add_u32 v{g.vTA[b][p]}, {65536*b}, v{g.vTA[0][p]}")
    S.release(sU)

def flag_store(g, which):
    if g.opt.get("nofs"): return
    g.a.vmem(f"buffer_store_dword v{g.vNon}, v{g.vFs}, {sr(g.sWS,4)}, 0 offen offset:{1024*which} sc1", "flag")

def flag_load(g, which=0):
    g.fl_issued = True
    g.a.vmem(f"buffer_load_dword v{g.vFl}, v{g.vFa}, {sr(g.sWS,4)}, 0 offen offset:{1024*which} sc1", "fl")

def flag_check(g):
    a = g.a; e = a.e
    assert g.fl_issued
    a.wait_vm("fl")
    e(f"v_cmp_ne_u32 vcc, v{g.vNon}, v{g.vFl}")
    e(f"s_mov_b32 s{g.sSame}, vcc_lo")

class Weave:
    def __init__(self, g):
        self.g = g; self.qv = []; self.qs = []; self.gap = 0; self.lastv = -99; self.pv = 4; self.cap = 2; self.vx = 0; self.pw = {}
    def cnt(self): return len(self.g.a.items)
    def fill(self, used):
        u0 = used
        while used < self.cap:
            n0 = self.cnt()
            if self.qv and (self.qv[0].kind != "v" or (self.gap - self.lastv >= self.pw.get(self.qv[0].grp, self.pv) and not (self.vx and u0))):
                op = self.qv.pop(0); op()
                if op.kind == "v" and self.cnt() > n0:
                    self.lastv = self.gap
                    if self.vx > 1: break
            elif self.qs: self.qs.pop(0)()
            else: break
            used += self.cnt() - n0
    def run(self, M, post=(), pre=None):
        post = list(post); pre = pre or {}
        for i, m in enumerate(M):
            if i in pre: pre[i]()
            m()
            n0 = self.cnt()
            if post:
                f = post.pop(0)
                if f: f()
            self.fill(self.cnt() - n0 + (1 if i + 1 in pre else 0))
            self.gap += 1
        assert not post
    def force(self, pred):
        while any(pred(o) for o in self.qv): self.qv.pop(0)()

def phase1(g):
    a, V, S = g.a, g.V, g.S; e = a.e; st = g.st; opt = g.opt
    vT0, vT1, vT2, vT3 = g.vT; vL, vN, vG = g.vL, g.vN, g.vG
    sW, sW1k, sW4k, sHi, sLo, sT, sT2 = g.sW, g.sW1k, g.sW4k, g.sHi, g.sLo, g.sT, g.sT2
    sRow = S.alloc(); sP4 = S.alloc()
    e(f"s_lshr_b32 s{sRow}, s{sHi}, 2")
    e(f"s_lshl_b32 s{sRow}, s{sRow}, 8")
    e(f"s_and_b32 s{sT}, s{sHi}, 1")
    e(f"s_lshl_b32 s{sT}, s{sT}, 7")
    e(f"s_add_u32 s{sRow}, s{sRow}, s{sT}")
    e(f"s_bfe_u32 s{sT}, s{sHi}, 0x10001")
    e(f"s_add_u32 s{sRow}, s{sRow}, s{sT}")
    vXo = [V.alloc(), V.alloc()]; vHo = V.alloc(); vWo = [V.alloc(), V.alloc()]
    P1R = opt.get("p1r", 1); sR7 = S.alloc()
    e(f"s_add_u32 s{sR7}, s{sHi}, s{sLo}" if opt.get("rlo", 1) else f"s_mov_b32 s{sR7}, s{sHi}")
    e(f"s_and_b32 s{sR7}, s{sR7}, {min(P1R, 4) - 1}")
    if opt.get("p3r", 0):
        e(f"s_and_b32 s{sR7}, s{sHi}, 3")
        if opt["p3r"] == 2: e(f"s_lshl_b32 s{sR7}, s{sR7}, 1")
        e(f"s_cmp_eq_u32 s{sLo}, 3")
        e(f"s_cselect_b32 s{sR7}, s{sR7}, 0")
    sOrd = S.alloc() if P1R >= 9 else None
    if P1R >= 9:
        LD = opt.get("ld", 1)
        for r in range(4):
            A_ = [x for x in range(4) if x != r]; B_ = [4 + x for x in range(4) if x != r]
            o = [r] + A_ + B_; o.insert(min(LD + r * opt.get("lds", 1), 4), 4 + r)
            tb = sum(c << (4*i) for i, c in enumerate(o))
            if r == 0: e(f"s_mov_b32 s{sOrd}, {tb:#x}")
            else:
                e(f"s_cmp_eq_u32 s{sR7}, {r}")
                e(f"s_cselect_b32 s{sOrd}, {tb:#x}, s{sOrd}")
        if P1R == 9:
            e(f"s_bitcmp1_b32 s{sHi}, 2")
            e(f"s_cselect_b32 s{sT}, 0x44444444, 0")
            e(f"s_xor_b32 s{sOrd}, s{sOrd}, s{sT}")
    if P1R in (8, 9):
        e(f"s_and_b32 s{sT}, s{sHi}, 4")
        e(f"s_or_b32 s{sR7}, s{sR7}, s{sT}")
    e(f"s_lshl_b32 s{sR7}, s{sR7}, 7")
    e(f"v_lshrrev_b32 v{vT0}, 3, v{vL}")
    e(f"v_and_b32 v{vT1}, 7, v{vL}")
    e(f"s_lshl_b32 s{sT}, s{sW}, 4")
    e(f"s_add_u32 s{sT}, s{sT}, s{sRow}")
    e(f"v_lshl_add_u32 v{vXo[0]}, v{vT0}, 1, s{sT}")
    e(f"v_lshlrev_b32 v{vXo[0]}, 10, v{vXo[0]}")
    e(f"s_and_b32 s{sP4}, s{sW}, 1")
    e(f"s_lshl_b32 s{sP4}, s{sP4}, 2")
    e(f"v_xor_b32 v{vT2}, v{vT1}, v{vG}")
    e(f"v_xor_b32 v{vT3}, s{sP4}, v{vT2}")
    e(f"v_lshl_add_u32 v{vXo[0]}, v{vT3}, 4, v{vXo[0]}")
    e(f"v_add_u32 v{vXo[1]}, {65536 - 3072}, v{vXo[0]}")
    e(f"s_sub_u32 s{sT}, s{sRow}, 16")
    e(f"v_lshl_add_u32 v{vHo}, v{vT0}, 1, s{sT}")
    e(f"v_max_i32 v{vHo}, 0, v{vHo}")
    e(f"v_lshlrev_b32 v{vHo}, 10, v{vHo}")
    e(f"v_xor_b32 v{vT3}, 4, v{vT2}")
    e(f"v_lshl_add_u32 v{vHo}, v{vT3}, 4, v{vHo}")
    sH = S.alloc(2, 1)
    if P1R >= 9:
        e(f"s_lshl_b32 s{sT}, s{sW}, 2")
        e(f"s_lshr_b32 s{sT}, s{sOrd}, s{sT}")
        e(f"s_lshl_b32 s{sH}, s{sT}, 7")
        e(f"s_and_b32 s{sH}, s{sH}, 0x380")
        e(f"s_lshr_b32 s{sH+1}, s{sT}, 9")
        e(f"s_and_b32 s{sH+1}, s{sH+1}, 0x380")
    else:
        e(f"s_lshl_b32 s{sT}, s{sW}, 7")
        e(f"s_xor_b32 s{sH}, s{sT}, s{sR7}")
        e(f"s_xor_b32 s{sH+1}, s{sH}, 512")
    e(f"s_lshl_b32 s{sT}, s{sW}, 3")
    e(f"v_add_u32 v{vWo[0]}, s{sT}, v{vT0}")
    e(f"v_mul_u32_u24 v{vWo[0]}, 3072, v{vWo[0]}")
    e(f"v_and_b32 v{vT3}, 2, v{vT0}")
    e(f"v_xor_b32 v{vT3}, v{vT3}, v{vT1}")
    e(f"v_xor_b32 v{vT3}, s{sP4}, v{vT3}")
    e(f"v_lshl_add_u32 v{vWo[0]}, v{vT3}, 4, v{vWo[0]}")
    e(f"s_lshl_b32 s{sT}, s{sLo}, 7")
    e(f"v_add_u32 v{vWo[0]}, s{sT}, v{vWo[0]}")
    e(f"v_add_u32 v{vWo[1]}, {98304 - 1024}, v{vWo[0]}")
    PQ0 = opt.get("pq0", 128); PQM = opt.get("pqm", 512); XC0 = opt.get("xc0", 0); XM = opt.get("xm", 8); R3 = opt.get("r3", 1); R30 = opt.get("r30", 0)
    PFE = opt.get("pfe", 1)
    vPo = V.alloc(); vPq = [V.alloc(), V.alloc()]; vPx = [V.alloc(), V.alloc()]
    R3S = opt.get("r3s", -9); vP3 = V.alloc() if R3S > -9 else None
    def pf_setup(part=7, mid=None):
        a.hold()
        sWi = S.alloc(); sWc = S.alloc()
        e(f"s_lshr_b32 s{sWi}, s2, 3")
        e(f"s_lshl2_add_u32 s{sWi}, s{sWi}, s{sW}")
        e(f"s_lshl2_add_u32 s{sWc}, s2, s{sW}")
        e(f"v_cmp_lt_u32 vcc, 31, v{vL}")
        for i, (r0, r1, t0) in enumerate(((PQ0, PQM, R30), (PQM, 512, PQM))):
            if r1 <= r0 or not part & (1 + i): continue
            e(f"s_mul_i32 s{sT}, s{sWc}, {3*(r1 - r0)}")
            e(f"s_add_u32 s{sT}, s{sT}, {3072*r0}")
            e(f"v_min_u32 v{vPq[i]}, {(3*(r1 - r0) + 127)//128 - 1}, v{vL}")
            e(f"v_lshl_add_u32 v{vPq[i]}, v{vPq[i]}, 7, s{sT}")
            if R3:
                n = (3*(r1 - t0) + 127) // 128
                e(f"s_mul_i32 s{sT}, s{sWi}, {n*1024}")
                e(f"s_add_u32 s{sT}, s{sT}, {max(0, 3*r1 - 128*n)*1024 + 384}")
                e(f"v_min_u32 v{vT2}, {n-1}, v{vN}")
                if i == 0 and R3S > -9: e(f"v_lshl_add_u32 v{vP3}, v{vT2}, 10, s{sT}")
                else:
                    e(f"v_lshl_add_u32 v{vT2}, v{vT2}, 10, s{sT}")
                    e(f"v_cndmask_b32 v{vPq[i]}, v{vPq[i]}, v{vT2}, vcc")
                if i == 0 and R3S > -9 and opt.get("r3z", 0):
                    n = (3*opt["r3z"] + 127) // 128
                    e(f"s_mul_i32 s{sT}, s{sWi}, {n*1024}")
                    e(f"s_add_u32 s{sT}, s{sT}, 384")
                    e(f"v_min_u32 v{vT2}, {n-1}, v{vN}")
                    e(f"v_lshl_add_u32 v{vT2}, v{vT2}, 10, s{sT}")
                    e(f"v_cndmask_b32 v{vPq[i]}, v{vPq[i]}, v{vT2}, vcc")
        if mid: mid()
        if part & 2:
            e(f"s_lshl_b32 s{sT}, s{sWc}, 9")
            e(f"v_and_b32 v{vT2}, 3, v{vL}")
            e(f"v_lshl_add_u32 v{vPo}, v{vT2}, 7, s{sT}")
            if R3:
                e(f"s_lshl_b32 s{sT}, s{sWi}, 12")
                e(f"s_add_u32 s{sT}, s{sT}, 384")
                e(f"v_lshl_add_u32 v{vT2}, v{vT2}, 10, s{sT}")
                e(f"v_cndmask_b32 v{vPo}, v{vPo}, v{vT2}, vcc")
        if part & 4:
            e(f"s_and_b32 s{sT}, s2, 7")
            e(f"s_lshl_b32 s{sT}, s{sT}, 8")
            e(f"s_add_u32 s{sT2}, s{sT}, s{sWi}")
            e(f"s_add_u32 s{sT}, s{sT2}, s{sWi}")
            e(f"s_sub_u32 s{sT2}, s{sT2}, 16")
            e(f"s_cmp_lt_u32 s{sWi}, 16")
            e(f"s_cselect_b32 s{sT2}, s{sT2}, s{sT}")
            e(f"v_bfe_u32 v{vT2}, v{vL}, 3, 1")
            e(f"v_add_u32 v{vT2}, s{sT}, v{vT2}")
            e(f"v_mov_b32 v{vT3}, s{sT2}")
            e(f"v_cndmask_b32 v{vT2}, v{vT2}, v{vT3}, vcc")
            e(f"v_lshlrev_b32 v{vT2}, 10, v{vT2}")
            e(f"v_and_b32 v{vT3}, 7, v{vL}")
            for i, (c0, c1) in enumerate(((XC0, XM), (XM, 8))):
                if c1 <= c0: continue
                e(f"v_med3_u32 v{vPx[i]}, v{vT3}, {c0}, {c1-1}")
                e(f"v_lshl_add_u32 v{vPx[i]}, v{vPx[i]}, 7, v{vT2}")
        S.release(sWi); S.release(sWc)
        a.unhold()
    def pfop(v, srd): return Op(lambda: a.vmem(f"buffer_load_dword v{g.vJ}, v{v}, {sr(srd,4)}, 0 offen", "pf"), "v")
    PFA = opt.get("pfa", 7)
    PF = {}
    for nm, bit, v, srd, on, dflt in (("qa", 1, vPq[0], g.sWQ, PQM > PQ0, 1), ("xa", 2, vPx[0], g.sX, XM > XC0, 1), ("wo", 4, vPo, g.sWO, 1, 2),
                                      ("qb", 1, vPq[1], g.sWQ, PQM < 512, 2), ("xb", 2, vPx[1], g.sX, XM < 8, 2)):
        if PFA & bit and on: PF.setdefault(opt.get("p" + nm, dflt), []).append(pfop(v, srd))
    if R3S > -9: PF.setdefault(R3S, []).append(pfop(vP3, g.sWQ))
    vTl = V.alloc()
    def tl_setup(): e(f"v_lshlrev_b32 v{vTl}, {opt.get('tls', 18)}, v{vL}")
    for nm, srd in (("tq", g.sWQ), ("tx", g.sX), ("t1", g.sW1), ("t2", g.sW2), ("tw", g.sWS), ("to", g.sOUT), ("tv", g.sWO)):
        if opt.get(nm, -9) > -9: PF.setdefault(opt[nm], []).append(pfop(vTl, srd))
    FS = opt.get("fs", 0)
    if FS == 2: pf_setup(5)
    elif FS:
        assert len(PF[-1]) == 2
        iB = len(a.items)
        def first(): a.lg = ["k"]; a.wait_lg(); PF[-1][0]()
        pf_setup(5, first); PF[-1][1](); PF[-1] = []
        seg = a.items[iB:]; del a.items[iB:]; a.items[g.iA:g.iA] = seg
    else:
        tl_setup()
        if PFE: pf_setup()
    sXs = S.alloc(); sWs = S.alloc(); sXc = S.alloc()
    e(f"s_mul_i32 s{sWs}, s{sR7}, 1536")
    e(f"s_mov_b32 s{g.sNon}, {WS_EP}")
    e(f"s_getreg_b32 s{sXc}, hwreg(HW_REG_XCC_ID, 0, 4)")
    if FS != 1: a.lg = ["k"]; a.wait_lg()
    e(f"s_load_dword s{g.sNon}, {sr(g.sWS,2)}, s{g.sNon}")
    stamp(g, 0)

    ES = opt.get("es", 0); assert not ES or (P1R == 1 and g.NR == 4)
    def dma(voff, srd, soff, imm, tag):
        if opt.get("nodma"): return
        a.vmem(f"buffer_load_dwordx4 v{voff}, {sr(srd,4)}, {soff} offen offset:{imm} lds", tag)
    def halo_ops(i):
        return [Op(lambda: e(f"s_add_u32 m0, s{sW1k}, {L_HL + 4096*i}"), "s", ("c", 4*i)),
                Op(lambda: dma(vHo, g.sX, f"s{sH+i}", 0, ("c", 4*i)), "v", ("c", 4*i))]
    def ring_ops(c):
        tg = ("c", c); L = []
        xs = f"s{sXs}" if c else f"s{sR7}"
        if c and P1R >= 9:
            L.append(Op(lambda: e(f"s_lshr_b32 s{sXs}, s{sOrd}, {4*c - 7}" if c > 1 else f"s_lshl_b32 s{sXs}, s{sOrd}, 3"), "s", tg))
            L.append(Op(lambda: e(f"s_and_b32 s{sXs}, s{sXs}, 0x380"), "s", tg))
        elif c: L.append(Op(lambda: e(f"s_xor_b32 s{sXs}, s{sR7}, {128*c}"), "s", tg))
        if c: L.append(Op(lambda: e(f"s_mul_i32 s{sWs}, s{sXs}, 1536"), "s", tg))
        for i in (1, 0):
            L.append(Op(lambda i=i: e(f"s_add_u32 m0, s{sW4k}, {RB(c % g.NR) + 16384*i}"), "s", tg))
            if not (ES and c >= 6): L.append(Op(lambda i=i: dma(vXo[1-i], g.sX, xs, 3072*(1 - i), tg), "v", tg))
            for t in range(3):
                L.append(Op(lambda i=i, t=t: dma(vWo[i], g.sWQ, f"s{sWs}", 1024*(t + i), tg), "v", tg))
        return L
    def xe_ops(c):
        tg = ("c", opt.get(f"te{c}", 10) // 2); L = [Op(lambda: e(f"s_mov_b32 s{sXs}, {128*c}"), "s", tg)]
        for i in (1, 0):
            if c == 6: L.append(Op(lambda i=i: e(f"s_add_u32 m0, s{sW4k}, {RB(2) + 16384*i}"), "s", tg))
            elif i: L.append(Op(lambda: e(f"s_mov_b32 m0, s{sW4k}"), "s", tg))
            L.append(Op(lambda i=i: dma(vXo[1-i], g.sX, f"s{sXs}", 3072*(1 - i), tg), "v", tg))
        return L
    def fuse(L):
        out = []; pend = []
        for o in L:
            pend.append(o)
            if o.kind == "v":
                out.append(Op(lambda P=tuple(pend): [p() for p in P], "v", o.grp)); pend = []
                out[-1].m = getattr(o, "m", None)
        assert not pend
        return out
    g.fuse = fuse
    for f in PF.get(-1, []) + halo_ops(0) + ring_ops(0) + PF.get(0, []): f()
    if opt.get("kl", 1): g.kload2()
    if opt.get("tsp") == 4:
        for n in (8, 7, 4, 0): e(f"s_waitcnt vmcnt({n})")
    PRO = opt.get("pro", 2)
    for c in range(1, PRO): a.bg += fuse(ring_ops(c))
    a.interval = opt.get("iv0", 300); a.last_bg = a.cyc
    if FS: pf_setup(2)
    elif not PFE: pf_setup()
    g.late()
    e(f"s_bfe_u32 s{sT}, s2, 0x20003")
    e(f"s_mul_i32 s{sT}, s{sT}, {448*4096}")
    e(f"s_lshl_b32 s{sT2}, s{sW}, 16")
    e(f"s_add_u32 s{sT}, s{sT}, s{sT2}")
    if opt.get("iws", 0): e(f"s_add_u32 s{sT}, s{sT}, {opt['iws'] << 18}")
    e(f"s_and_b32 s{sT2}, s2, 7")
    e(f"s_lshl_b32 s{sT2}, s{sT2}, 9")
    e(f"s_add_u32 s{sT}, s{sT}, s{sT2}")
    e(f"v_lshrrev_b32 v{vT2}, 2, v{vL}")
    e(f"v_lshl_add_u32 v{g.vIW}, v{vT2}, 12, s{sT}")
    e(f"v_and_b32 v{vT2}, 3, v{vL}")
    e(f"v_lshl_add_u32 v{g.vIW}, v{vT2}, 7, v{g.vIW}")
    g.niw = opt.get("iws", 0)
    def IW():
        a.vmem(f"buffer_load_dword v{g.vJ}, v{g.vIW}, {sr(g.sWI,4)}, 0 offen", "pf")
        e(f"v_add_u32 v{g.vIW}, {1 << 18}, v{g.vIW}")
        g.niw += 1
    g.IW = IW
    PW = {}; g.PW = PW
    for i in range(4):
        if opt.get(f"iw{i}", -1) >= 0: PW.setdefault(opt[f"iw{i}"], []).append(Op(IW, "v"))
    a.bg = PF.get(1, []) + a.bg + PF.get(2, [])
    for k in PF:
        if k >= 10: PW.setdefault(k - 10, []).extend(PF[k])
    g.sG = S.alloc(4, 1); g.sR14 = S.alloc()
    sD = S.alloc()
    e(f"s_and_b32 s{sD}, s{g.sD3}, 6")
    if opt.get("rm", 0):
        e(f"s_bfe_u32 s{sT}, s{g.sD3}, 0x10001")
        e(f"s_and_b32 s{sD}, s{g.sD3}, 4")
        e(f"s_or_b32 s{sD}, s{sD}, s{sT}")
        e(f"s_lshr_b32 s{sT}, s{g.sFt}, 1")
        e(f"s_andn2_b32 s{sT}, 2, s{sT}" if opt["rm"] == 1 else f"s_and_b32 s{sT}, 2, s{sT}")
        e(f"s_or_b32 s{sD}, s{sD}, s{sT}")
    if opt.get("w3", -1) >= 0:
        vW3 = V.alloc()
        e(f"s_bfe_u32 s{sT}, s2, 0x20001")
        e(f"s_mul_i32 s{sT}, s{sT}, 7")
        e(f"s_or_b32 s{sT}, s{sT}, 3")
        e(f"v_bfe_u32 v{vT2}, v{vL}, 3, 1")
        e(f"s_cmp_eq_u32 s{sT}, 3")
        e(f"s_cselect_b32 s{sT2}, 0, 4")
        e(f"v_mov_b32 v{vT3}, s{sT}")
        e(f"v_mad_u32_u24 v{vT2}, v{vT2}, s{sT2}, v{vT3}")
        e(f"v_bfe_u32 v{vT3}, v{vT2}, 2, 1")
        e(f"v_lshlrev_b32 v{vW3}, 7, v{vT2}")
        e(f"s_lshr_b32 s{sT}, s2, 3")
        e(f"s_lshl2_add_u32 s{sT}, s{sT}, s{sW}")
        e(f"s_lshl_b32 s{sT}, s{sT}, 4")
        e(f"v_and_b32 v{vT2}, 7, v{vL}")
        e(f"v_lshl_add_u32 v{vT3}, v{vT2}, 1, v{vT3}")
        e(f"v_add_u32 v{vT3}, s{sT}, v{vT3}")
        e(f"v_mul_u32_u24 v{vT3}, 3584, v{vT3}")
        e(f"v_add_u32 v{vW3}, v{vT3}, v{vW3}")
        PW.setdefault(opt["w3"], []).append(Op(lambda: a.vmem(f"global_load_dword v{g.vJ}, v{vW3}, {sr(g.sW1,2)}", "pf"), "v"))
    if opt.get("w1p", -1) >= 0:
        NP1 = opt.get("w1n", 1); vW1 = V.alloc()
        e(f"s_lshl2_add_u32 s{sT}, s2, s{sW}")
        e(f"s_mul_i32 s{sT}, s{sT}, {56*128}")
        e(f"v_min_u32 v{vW1}, {56 // NP1 - 1}, v{vL}")
        e(f"v_lshl_add_u32 v{vW1}, v{vW1}, 7, s{sT}")
        for i in range(opt.get("w1k", NP1)):
            PW.setdefault(opt["w1p"] + i * opt.get("w1d", 2), []).append(Op(lambda i=i: (i and e(f"v_add_u32 v{vW1}, {56 // NP1 * 128}, v{vW1}"),
                a.vmem(f"global_load_dword v{g.vJ}, v{vW1}, {sr(g.sW1,2)}", "pf")), "v"))
    if opt.get("rot", 0):
        e(f"s_lshr_b32 s{sT}, s2, 5")
        e(f"s_and_b32 s{sT}, s{sT}, {opt['rot']}")
        e(f"s_xor_b32 s{sD}, s{sD}, s{sT}")
    e(f"s_and_b32 s{sT}, s{sW}, 1")
    e(f"s_lshl1_add_u32 s{g.sR14}, s{sD}, s{sT}")
    e(f"s_lshl_b32 s{g.sR14}, s{g.sR14}, 12")
    e(f"s_lshr_b32 s{g.sG}, s{sD}, 2")
    e(f"s_mul_i32 s{g.sG}, s{g.sG}, {256*3584}")
    e(f"s_and_b32 s{sT}, s{sD}, 1")
    e(f"s_mul_i32 s{sT}, s{sT}, {128*3584}")
    e(f"s_sub_u32 s{g.sG+1}, s{g.sG}, s{sT}")
    e(f"s_add_u32 s{g.sG}, s{g.sG}, s{sT}")
    e(f"s_add_u32 s{g.sG+1}, s{g.sG+1}, {128*3584}")
    e(f"s_bfe_u32 s{sT}, s{sD}, 0x10001")
    e(f"s_mul_i32 s{sT}, s{sT}, 3584")
    e(f"s_sub_u32 s{sT2}, 3584, s{sT}")
    e(f"s_add_u32 s{g.sG+2}, s{g.sG}, s{sT2}")
    e(f"s_add_u32 s{g.sG+3}, s{g.sG+1}, s{sT2}")
    e(f"s_add_u32 s{g.sG}, s{g.sG}, s{sT}")
    e(f"s_add_u32 s{g.sG+1}, s{g.sG+1}, s{sT}")
    S.release(sD)
    handoff_setup(g)

    XF = [[V.alloc(4) for t in range(5)] for b in range(2)]
    WF = [[V.alloc(4) for t in range(3)] for b in range(2)]
    acc = [[V.alloc(4) for t in range(5)] for ty in range(3)]
    ST = [V.alloc(4) for t in range(5)]
    vOne = V.alloc(4)
    vXa = [[V.alloc(), V.alloc()], [V.alloc(), V.alloc()]]; vHa = [V.alloc(), V.alloc()]
    vWa = [[V.alloc(), V.alloc()], [V.alloc(), V.alloc()]]
    for i in range(4): e(f"v_mov_b32 v{vOne+i}, 0x3f803f80")
    e(f"s_lshl_b32 s{sT}, s{sW}, 11")
    e(f"v_lshl_add_u32 v{vT0}, v{vL}, 4, s{sT}")
    for i in range(2): a.ds(f"ds_write_b128 v{vT0}, {vr(vOne,4)} offset:{L_ONE + 1024*i}", "one")
    e(f"v_lshrrev_b32 v{vT0}, 1, v{vN}")
    e(f"v_xor_b32 v{vT0}, v{vT0}, v{vG}")
    e(f"v_xor_b32 v{vT0}, s{sP4}, v{vT0}")
    e(f"v_lshlrev_b32 v{vT0}, 4, v{vT0}")
    e(f"v_and_b32 v{vT1}, 7, v{vN}")
    e(f"v_lshl_add_u32 v{vT0}, v{vT1}, 7, v{vT0}")
    e(f"v_lshrrev_b32 v{vT1}, 3, v{vN}")
    e(f"v_lshl_add_u32 v{vXa[0][0]}, v{vT1}, 12, v{vT0}")
    if ES:
        vXz = [V.alloc(), V.alloc()]
        e(f"v_mov_b32 v{vXz[0]}, v{vXa[0][0]}")
        e(f"v_xor_b32 v{vXz[1]}, 64, v{vXa[0][0]}")
    e(f"v_add_u32 v{vXa[0][0]}, {RB(0)}, v{vXa[0][0]}")
    e(f"v_xor_b32 v{vXa[0][1]}, 64, v{vXa[0][0]}")
    for ab in range(2): e(f"v_add_u32 v{vXa[1][ab]}, 65536, v{vXa[0][ab]}")
    e(f"v_lshl_add_u32 v{vHa[0]}, v{vT1}, 13, v{vT0}")
    e(f"v_xor_b32 v{vHa[1]}, 64, v{vHa[0]}")
    e(f"v_lshrrev_b32 v{vT0}, 2, v{vN}")
    e(f"v_lshlrev_b32 v{vT1}, 12, v{vG}")
    e(f"v_lshl_add_u32 v{vT1}, v{vT0}, 7, v{vT1}")
    e(f"v_and_b32 v{vT0}, 2, v{vT0}")
    e(f"v_and_b32 v{vT2}, 1, v{vG}")
    e(f"v_lshl_add_u32 v{vT0}, v{vT2}, 2, v{vT0}")
    e(f"v_bfe_u32 v{vT2}, v{vN}, 1, 1")
    e(f"s_lshl_b32 s{sT}, s{sW}, 1")
    e(f"v_add_u32 v{vT2}, s{sT}, v{vT2}")
    e(f"v_xor_b32 v{vT0}, v{vT0}, v{vT2}")
    e(f"v_lshl_add_u32 v{vT1}, v{vT0}, 4, v{vT1}")
    e(f"v_and_b32 v{vT0}, 1, v{vN}")
    e(f"v_lshl_add_u32 v{vT1}, v{vT0}, 3, v{vT1}")
    e(f"s_mul_i32 s{sT}, s{sP4}, {17408 // 4}")
    e(f"s_add_u32 s{sT}, s{sT}, {RB(0)}")
    e(f"v_add_u32 v{vWa[0][0]}, s{sT}, v{vT1}")
    e(f"v_xor_b32 v{vWa[0][1]}, 17408, v{vWa[0][0]}")
    for ab in range(2): e(f"v_add_u32 v{vWa[1][ab]}, 65536, v{vWa[0][ab]}")

    AG = [32*(i >> 2) + 4*(i & 3) for i in range(20)]
    XA = {12: AG[0:5], 14: AG[5:10], 15: AG[10:15]} if ES else {}
    WA = {15: AG[15:18]} if ES else {}
    xop = lambda s, t: ar(XA[s][t], 4) if s in XA else vr(XF[s & 1][t], 4)
    wop = lambda s, ty, o=0, n=4: ar(WA[s][ty] + o, n) if s in WA else vr(WF[s & 1][ty] + o, n)
    def xreads(s, tg="r"):
        c = s >> 1; ab = s & 1; r = c % g.NR
        L = [lambda: a.ds(f"ds_read_b128 {xop(s, 0)}, v{vHa[ab]} offset:{L_ONE + 1024*c}", (tg, s, 0))]
        for t in range(1, 5):
            if ES and c == 7: L.append(lambda t=t: a.ds(f"ds_read_b128 {xop(s, t)}, v{vXz[ab]} offset:{(0, 8192, 3072, 11264)[t-1]}", (tg, s, t)))
            else: L.append(lambda t=t: a.ds(f"ds_read_b128 {xop(s, t)}, v{vXa[r>>1][ab]} offset:{(r&1)*32768 + (16384, 24576, 3072, 11264)[t-1]}", (tg, s, t)))
        return L
    def reads(s):
        c = s >> 1; ab = s & 1; r = c % g.NR; L = []
        for ty in range(3):
            for h in range(2):
                L.append(lambda ty=ty, h=h: a.ds(f"ds_read_b64_tr_b16 {wop(s, ty, 2*h, 2)}, v{vWa[r>>1][ab]} offset:{(r&1)*32768 + ty*1024 + h*512}", ("r", s, 0)))
        return L + ([] if s in XA else xreads(s))
    subst = {}
    def mfmas(s):
        def C(r): return "0" if s == 0 else vr(r, 4)
        def stat(t):
            x = f"v_mfma_f32_16x16x32_bf16 {vr(ST[t],4)}, {vr(vOne,4)}, {xop(s, t)}, {C(ST[t])}"
            subst[x] = f"v_mfma_f32_16x16x32_bf16 {vr(ST[t],4)}, {xop(s, t)}, {xop(s, t)}, {C(ST[t])}"
            return lambda: e(x)
        def mm(t, ty):
            A, B = (wop(s, ty), xop(s, t)) if ty < 2 else (xop(s, t), wop(s, ty)); r = acc[ty][t]
            return lambda: e(f"v_mfma_f32_16x16x32_bf16 {vr(r,4)}, {A}, {B}, {C(r)}")
        return [stat(t) for t in range(5)] if s & 1 == 0 else None, [[mm(t, ty) for ty in range(3)] for t in range(5)]

    a.hold()
    sM = [S.alloc(2, 2) for _ in range(3)]
    e(f"v_and_b32 v{vT0}, 3, v{vN}")
    for i in range(3): e(f"v_cmp_eq_u32 {sr(sM[i],2)}, {i+1}, v{vT0}")
    a.unhold()
    sLe = [S.alloc(2, 2) for _ in range(4)]
    vBias = V.alloc(4); vBias1 = V.alloc(4); vMc = V.alloc(2); vMp = V.alloc(2)
    e(f"v_lshlrev_b32 v{vT0}, 2, v{vG}")
    e(f"v_sub_u32 v{vT0}, v{vN}, v{vT0}")
    sNeg = S.alloc(); sB = S.alloc()
    e(f"s_mov_b32 s{sNeg}, 0xf149f2ca")
    e(f"v_mov_b32 v{vT3}, s{sNeg}")
    e(f"s_cmp_lt_u32 s{sRow}, 16")
    e(f"s_cselect_b32 s{sB}, s{sNeg}, 0")
    for i in range(4):
        e(f"v_cmp_le_i32 {sr(sLe[i],2)}, {i}, v{vT0}")
        e(f"v_subrev_u32 v{vT1}, {i}, v{vT0}")
        e(f"v_and_b32 v{vT1}, 8, v{vT1}")
        e(f"v_cmp_eq_u32 vcc, 0, v{vT1}")
        e(f"v_cndmask_b32 v{vBias+i}, v{vT3}, 0, vcc")
        e(f"v_min_f32 v{vBias1+i}, s{sB}, v{vBias+i}")
    e(f"v_mov_b32 v{vT1}, 0xffff")
    e(f"v_mov_b32 v{vT2}, 0xffff0000")
    for p in range(2):
        e(f"v_cndmask_b32 v{vT0}, 0, v{vT1}, {sr(sLe[2*p],2)}")
        e(f"v_cndmask_b32 v{vT3}, 0, v{vT2}, {sr(sLe[2*p+1],2)}")
        e(f"v_or_b32 v{vMc+p}, v{vT0}, v{vT3}")
        e(f"v_not_b32 v{vMp+p}, v{vMc+p}")
    S.release(sNeg); S.release(sB)
    vPw = V.alloc(); vPr = V.alloc(); vPr2 = V.alloc(); vNw = V.alloc(); vNw2 = V.alloc(); vNl = V.alloc(); vNr = V.alloc(); vNp = V.alloc()
    e(f"s_lshl_b32 s{sT}, s{sW}, 2")
    e(f"v_lshl_add_u32 v{vPw}, v{vN}, 4, s{sT}")
    e(f"v_lshrrev_b32 v{vT0}, 2, v{vN}")
    e(f"v_mov_b32 v{vT1}, 1280")
    e(f"v_lshl_add_u32 v{vT1}, v{vL}, 2, v{vT1}")
    e(f"v_cmp_eq_u32 vcc, v{vT0}, v{vG}")
    e(f"v_cndmask_b32 v{vPw}, v{vT1}, v{vPw}, vcc")
    e(f"v_lshlrev_b32 v{vPr}, 4, v{vL}")
    e(f"v_lshlrev_b32 v{vPr2}, 4, v{vN}")
    if ES: e(f"s_add_u32 s{sT}, s{sW4k}, 1024")
    else:
        e(f"s_mul_i32 s{sT}, s{sW}, 1280")
        e(f"s_add_u32 s{sT}, s{sT}, {N_OFF}")
    e(f"v_lshl_add_u32 v{vNw}, v{vL}, 2, s{sT}")
    e(f"v_lshl_add_u32 v{vNw2}, v{vN}, 2, s{sT}")
    e(f"v_add_u32 v{vNw2}, 256, v{vNw2}")
    e(f"v_lshl_add_u32 v{vNl}, v{vN}, 3, s{sT}")
    e(f"v_lshl_add_u32 v{vNr}, v{vG}, 4, s{sT}")
    e(f"v_lshl_add_u32 v{vNp}, v{vL}, 3, s{sT}")
    vOo = V.alloc(4, 1); sOo = S.alloc(); vXro = V.alloc(2, 1)
    WR = opt.get("wr", 0)
    if WR:
        g.sWr = S.alloc(); sWr17 = S.alloc()
        e(f"s_and_b32 s{g.sWr}, s{sHi}, {WR & 3}")
        if WR & 4:
            e(f"s_lshl_b32 s{sWr17}, s{g.sWr}, 1")
            e(f"s_lshr_b32 s{g.sWr}, s{g.sWr}, 1")
            e(f"s_or_b32 s{g.sWr}, s{g.sWr}, s{sWr17}")
            e(f"s_and_b32 s{g.sWr}, s{g.sWr}, 3")
        e(f"s_lshl_b32 s{sWr17}, s{g.sWr}, 17")
        e(f"s_lshl_b32 s{g.sWr}, s{g.sWr}, 12")
    g.so_line = lambda s_, q: f"s_xor_b32 s{s_}, s{g.sWr}, {q*4096}" if WR else f"s_mov_b32 s{s_}, {q*4096}"
    e(f"v_lshrrev_b32 v{vT0}, 3, v{vL}")
    e(f"v_lshlrev_b32 v{vOo}, 10, v{vT0}")
    e(f"v_and_b32 v{vT0}, 7, v{vL}")
    e(f"v_lshlrev_b32 v{vT1}, 1, v{vG}")
    e(f"v_xor_b32 v{vT0}, v{vT0}, v{vT1}")
    e(f"v_lshl_add_u32 v{vOo}, v{vT0}, 4, v{vOo}")
    e(f"s_lshl_b32 s{sT}, s{sW}, 15")
    e(f"s_lshl_b32 s{sT2}, s{sLo}, 7")
    e(f"s_add_u32 s{sT}, s{sT}, s{sT2}")
    e(f"v_add_u32 v{vOo}, s{sT}, v{vOo}")
    for j in range(1, 4): e(f"v_add_u32 v{vOo+j}, {7168*j}, v{vOo}")
    def wo_ops(m):
        if opt.get("nowo"): return []
        L = [Op(lambda: e(f"s_add_u32 m0, s{sW4k}, {g.L_WO + 16384*(m ^ g.WX)}"), "s", "wo"),
             Op(lambda: e(f"s_xor_b32 s{sOo}, s{sWr17}, {131072*m}" if WR else f"s_mov_b32 s{sOo}, {131072*m}"), "s", "wo")]
        for j in range(4):
            L.append(Op(lambda j=j: a.vmem(f"buffer_load_dwordx4 v{vOo+j}, {sr(g.sWO,4)}, s{sOo} offen offset:{1024*j} lds", ("wo", m)), "v", "wo"))
            L[-1].m = ("wo", m)
        return L
    vWq = g.vWq
    e(f"v_lshrrev_b32 v{vT0}, 1, v{vG}")
    e(f"v_and_b32 v{vT1}, 1, v{vG}")
    e(f"v_lshlrev_b32 v{vT0}, 4, v{vT0}")
    e(f"v_lshl_add_u32 v{vT0}, v{vT1}, 2, v{vT0}")
    e(f"v_lshrrev_b32 v{vT2}, 2, v{vN}")
    e(f"v_add_u32 v{vT0}, v{vT0}, v{vT2}")
    e(f"v_lshlrev_b32 v{vT0}, 7, v{vT0}")
    e(f"v_and_b32 v{vT2}, 3, v{vN}")
    e(f"v_lshl_add_u32 v{vT0}, v{vT2}, 3, v{vT0}")
    e(f"v_lshrrev_b32 v{vT2}, 3, v{vN}")
    e(f"v_lshl_add_u32 v{vT1}, v{vT1}, 1, v{vT2}")
    e(f"v_lshl_add_u32 v{vT0}, v{vT1}, 5, v{vT0}")
    e(f"v_add_u32 v{vWq[0]}, {g.L_WO}, v{vT0}")
    for mt in range(1, 4): e(f"v_xor_b32 v{vWq[mt]}, {32*mt}, v{vWq[0]}")
    KA = opt.get("ka", 8); HK = opt.get("hk", 8)
    g.WG = [2*j for _, j in st.items[16 - KA:8]] + [2*j + 1 for _, j in st.items[:min(KA, 8)]]; st.busy = set(g.WG)
    def wo_rd(k, mt, h, dst): a.ds(f"ds_read_b64_tr_b16 {dst}, v{vWq[mt]} offset:{(k ^ 4*g.WX)*4096+h*1024}", ("wf", k))
    g.wo_rd = wo_rd
    e(f"s_lshl_b32 s{sT}, s{sP4}, 3")
    e(f"s_lshr_b32 s{sT2}, s{sW}, 1")
    e(f"s_add_u32 s{sT}, s{sT}, s{sT2}")
    e(f"s_lshl_b32 s{sT2}, s{sHi}, 6")
    e(f"s_add_u32 s{sT}, s{sT}, s{sT2}")
    e(f"s_lshl_b32 s{sT}, s{sT}, 10")
    e(f"s_lshl_b32 s{sT2}, s{sLo}, 7")
    e(f"s_add_u32 s{sT}, s{sT}, s{sT2}")
    e(f"v_lshrrev_b32 v{vT0}, 3, v{vL}")
    e(f"v_lshl_add_u32 v{vXro}, v{vT0}, 11, s{sT}")
    e(f"v_and_b32 v{vT0}, 7, v{vL}")
    e(f"v_xor_b32 v{vT0}, v{vT0}, v{vG}")
    e(f"v_lshl_add_u32 v{vXro}, v{vT0}, 4, v{vXro}")
    e(f"v_add_u32 v{vXro+1}, {16384 - 1024}, v{vXro}")
    e(f"v_xor_b32 v{vXro+1}, 64, v{vXro+1}")
    g.sW2k = S.alloc(); e(f"s_lshl_b32 s{g.sW2k}, s{sW}, 11")
    xr_ops = [Op(lambda: e(f"s_add_u32 m0, s{g.sW2k}, {L_XR}"), "s", "xr")]
    xr_ops += [Op(lambda i=i: a.vmem(f"buffer_load_dwordx4 v{vXro+i}, {sr(g.sX,4)}, 0 offen offset:{1024*i} lds", "xr"), "v", "xr") for i in range(2)]
    if opt.get("nost"):
        for i in range(256): e(f"v_accvgpr_write_b32 a{i}, 0")
    a.run_bg()
    for c in range(PRO, opt.get("pro2", PRO)):
        for f in ring_ops(c): f()
    PRO = max(PRO, opt.get("pro2", PRO))
    a.lg = ["k"]; a.wait_lg()
    e(f"s_lshr_b32 s{g.sNon}, s{g.sNon}, 4")
    e(f"s_mul_i32 s{g.sNon}, s{g.sNon}, 0x9e3779b1")
    e(f"s_add_u32 s{g.sNon}, s{g.sNon}, 0x7f4a7c15")
    e(f"s_lshl_b32 s{g.sNon}, s{g.sNon}, 4")
    e(f"s_or_b32 s{g.sNon}, s{g.sNon}, s{sXc}")
    e(f"v_mov_b32 v{g.vNon}, s{g.sNon}")
    g.sTM = S.alloc()
    e(f"s_lshr_b32 s{sT}, s{g.sNon}, 4")
    e(f"s_mov_b32 s{g.sTM}, {TMASK:#x}")
    e(f"v_and_b32 v{vT0}, 3, v{vL}")
    e(f"v_mul_u32_u24 v{vT0}, 0x47, v{vT0}")
    e(f"v_add_u32 v{vT0}, s{sT}, v{vT0}")
    e(f"v_and_b32 v{vT0}, 0xff, v{vT0}")
    e(f"v_lshl_or_b32 v{vT0}, v{vT0}, 15, v{vT0}")
    for i in range(4):
        e(f"v_lshlrev_b32 v{g.vTg+i}, {14 - 2*i}, v{vT0}")
        e(f"v_and_b32 v{g.vTg+i}, s{g.sTM}, v{g.vTg+i}")
    S.release(sXc)

    e(f"s_min_u32 s{sT}, s{g.sFt}, 27")
    e(f"s_lshl_b32 s{sT}, s{sT}, 7")
    e(f"v_mov_b32 v{vT2}, s{sT}")
    e(f"s_lshl_b32 s{sT}, s{sHi}, 7")
    e(f"v_mov_b32 v{vT3}, s{sT}")
    PW.setdefault(opt.get("pb", 15), []).extend([
        Op(lambda: a.vmem(f"global_load_dword v{g.vJ}, v{vT2}, {sr(g.sB1,2)}", "pf"), "v"),
        Op(lambda: a.vmem(f"global_load_dword v{g.vJ}, v{vT3}, {sr(g.sB2,2)}", "pf"), "v")])

    W = Weave(g); W.pv = opt.get("pv0", 3); W.cap = opt.get("cap", 2); W.vx = opt.get("vx", 0)
    for k in ("wo", "st", "xr"):
        if "pv" + k in opt: W.pw[k] = opt["pv" + k]
    def holes(L, n):
        HO = opt.get("ho", 0)
        if not HO: return L
        out = []
        for i, f in enumerate(L):
            out.append(f)
            if i % HO == HO - 1 and len(out) + len(L) - 1 - i < n: out.append(None)
        return out
    a.hold()
    WOR = opt.get("wor", 0)
    sched = {}
    def at(c1, ops): sched.setdefault(c1, []).extend(ops)
    post = {}
    post.setdefault(opt.get("t_fs", 5), []).append(Op(lambda: flag_store(g, 0), "v"))
    if opt.get("prd", 1): PW[opt.get("t_prd", 13)] = g.prd + PW.get(opt.get("t_prd", 13), [])
    at(8, xr_ops)
    g.fl_issued = False; TFL = opt.get("t_fl", 8); FL = Op(lambda: flag_load(g), "v")
    if opt.get("rep"):
        sRep = S.alloc(); e(f"s_mov_b32 s{sRep}, 0"); a.label("L_rep")
    e(f"s_cmp_ge_u32 s{sW}, 2")
    a.wait_vm(("c", 0)); e("s_barrier")
    e("s_cbranch_scc1 L_loopB")
    if opt.get("tsp"):
        P = [[22, 60, 106, 124, 200, 280], [330, 400, 418, 421, 445, 447], [3, 5, 8, 13, 17, 23], [106, 121, 122, 123, 124, 125], [18, 50, 90, 125, 128, 146], [146, 220, 300, 380, 440, 470]][opt["tsp"] - 1]
        for k, p in reversed(list(enumerate(P))): a.items.insert(p, Ins(f"s_memtime s[{84+2*k}:{85+2*k}]"))
    i0 = len(a.items)
    stamp(g, 1)
    if opt.get("ts"): e(f"v_writelane_b32 v{g.vTS}, s100, 0")
    if opt.get("tsp"):
        for k in range(6): e(f"v_writelane_b32 v{g.vTS}, s{84+2*k}, {3+k}")
    for f in reads(0): f()
    DIST = opt.get("dist", 2)
    for c in range(PRO, DIST + 1): W.qv += ring_ops(c)
    at(opt.get("t_h1", 0), halo_ops(1))
    W.qv += sched.get(0, [])
    W.qv += post.get(0, []) + PW.get(0, []) + PW.get(1, [])
    Dg = [V.alloc() for _ in range(5)]
    def sel(t):
        e(f"v_cndmask_b32 v{Dg[t]}, v{ST[t]}, v{ST[t]+1}, {sr(sM[0],2)}")
        e(f"v_cndmask_b32 v{Dg[t]}, v{Dg[t]}, v{ST[t]+2}, {sr(sM[1],2)}")
        e(f"v_cndmask_b32 v{Dg[t]}, v{Dg[t]}, v{ST[t]+3}, {sr(sM[2],2)}")
    XS = lambda s: [2*c for c in (6, 7) if ES and opt.get(f"te{c}", 10) == s]
    def fit(L, n):
        k = max(0, len(L) - n); assert k <= n
        return L[:len(L) - 2*k] + [lambda f=L[i], h=L[i+1]: (f(), h()) for i in range(len(L) - 2*k, len(L), 2)]
    def zipx(L, n, o=0):
        L = list(L) + [None] * (n - len(L))
        for i in range(o, n):
            if EX: L[i] = lambda f=L[i], h=EX.pop(0): (f and f(), h and h())
        return L
    wr = [lambda t=t: a.ds(f"ds_write_b32 v{vPw}, v{Dg[t]} offset:{P_OFF + 256*t}", "pw") for t in range(5)]
    def fin(p):
        q = Pq[p]
        return [
            lambda: (a.wait_lg("pr"), e(f"v_add_f32 v{q}, v{q}, v{q+1}"), e(f"v_add_f32 v{q+2}, v{q+2}, v{q+3}")),
            lambda: (e(f"v_mul_f32 v{q}, s{sInv}, v{q}"), e(f"v_mov_b32 v{q+3}, s{sEps}")),
            lambda: (e(f"v_fmac_f32 v{q+3}, s{sInv}, v{q+2}"), e(f"v_fma_f32 v{q+3}, -v{q}, v{q}, v{q+3}")),
            lambda: (e(f"v_max_f32 v{q+3}, s{sEps}, v{q+3}"), e(f"v_rsq_f32 v{q+1}, v{q+3}")),
            lambda: (e(f"v_mul_f32 v{q}, -v{q}, v{q+1}"),),
        ]
    prd = [lambda: a.ds(f"ds_read_b128 {vr(Pq[0],4)}, v{vPr} offset:{P_OFF}", "pr"),
           lambda: a.ds(f"ds_read_b128 {vr(Pq[1],4)}, v{vPr2} offset:{P_OFF+1024}", "pr")]
    nwr = [lambda: a.ds(f"ds_write_b64 v{vNp}, {vr(Pq[0],2)}", "nw"),
           lambda: a.ds(f"ds_write2_b32 v{vNw}, v{Pq[0]}, v{Pq[0]+1} offset0:160 offset1:240", "nw"),
           lambda: a.ds(f"ds_write_b64 v{vNl}, {vr(Pq[1],2)} offset:512", "nw"),
           lambda: a.ds(f"ds_write2_b32 v{vNw2}, v{Pq[1]}, v{Pq[1]+1} offset0:160 offset1:240", "nw")]
    nlr = [lambda t=t: a.ds(f"ds_read_b64 {vr(NL[t],2)}, v{vNl} offset:{128*t}", ("nl", t)) for t in range(5)]
    nrr = [lambda t=t: (a.ds(f"ds_read_b128 {vr(NMr[t],4)}, v{vNr} offset:{640+64*t}", ("nr", t)),
                        a.ds(f"ds_read_b128 {vr(Rr[t],4)}, v{vNr} offset:{960+64*t}", ("nr", t))) for t in range(5)]
    PERM = ("v_mov_b32 v{1}, v{4}", "v_mov_b32 v{0}, v{4}", "v_permlane16_swap_b32 v{0}, v{1}", "v_mov_b32 v{2}, v{0}", "v_mov_b32 v{3}, v{1}",
            "v_permlane32_swap_b32 v{0}, v{2}", "v_permlane32_swap_b32 v{1}, v{3}")
    def tz(k):
        if opt.get("tsz"): a.items.append(Ins(f"s_memtime s[{84+2*k}:{85+2*k}]"))
    def loop_end():
        tz(2)
        i1 = len(a.items)
        a.label("L_loopE")
        tz(3)
        if opt.get("rep"):
            e(f"s_add_u32 s{sRep}, s{sRep}, 1"); e(f"s_cmp_le_u32 s{sRep}, {opt['rep']}"); e("s_cbranch_scc1 L_rep")
        g.loopB = ["L_loopB:"] + [Ins(subst.get(it.text, it.text)) for it in a.items[i0:i1]] + [Ins("s_branch L_loopE")]
    if ES:
        NP = opt.get("np", 1); XB2 = opt.get("xb2", 1)
        Pq = [V.alloc(4), V.alloc(4)]; NL = [V.alloc(2) for t in range(4)]; NMr = XF[0]; Rr = ST
        NL.append(Pq[1] if NP else V.alloc(2))
        S.release(sRow); S.release(sP4)
        sInv = S.alloc(); sEps = S.alloc()
        EX = [f for pr in zip(fin(0), fin(1)) for f in pr]; LX = []
        if NP:
            for x in PERM:
                EX.append(lambda x=x: [e(x.format(*[r + j for r in NL[:4] + [Pq[0]]])) for j in (1, 0)])
            LX = [lambda: (nwr[1](), nwr[3]())] + nrr
        else: EX += nwr + nlr + nrr
        for c in (6, 7):
            tx = opt.get(f"tx{c}", 3)
            (W.qv if tx == 0 else (sched if opt.get("xfr", 0) else post).setdefault(tx, [])).extend(xe_ops(c))
    for s in range(14 if ES else 15):
        SM, M = mfmas(s)
        flat = [m for t in M for m in t]
        if ES and s == 11: W.cap = opt.get("cape", 4)
        PB = opt.get(f"p{s}", opt.get("pbar", 0)) if s & 1 else 0
        if PB:
            a.wait_lg(("r", s, 4))
            W.run(flat[:PB], zipx([], PB) if ES and s == 13 else []); flat = flat[PB:]
        if s & 1:
            c1 = (s + 1) >> 1
            W.force(lambda o: o.grp == ("c", c1))
            a.wait_lg([("r", s, 4)] + ([] if ES and XB2 else ["pw"]))
            if s == 11: tz(4)
            a.wait_vm(("c", c1))
            if s == 11: tz(5)
            e("s_barrier")
            if opt.get("tsl"): stamp(g, 3 + c1, True)
            if s == 11 and opt.get("tsz"):
                for k in range(6): e(f"v_writelane_b32 v{g.vTS}, s{84+2*k}, {16+k}")
            if c1 == TFL and c1 + DIST >= 8: W.qv.insert(0, FL)
            W.qv += sched.get(c1, [])
            R7 = opt.get("r7", 5)
            if PRO <= c1 + DIST < 8 and not (c1 == 5 and R7 == 4): W.qv += ring_ops(c1 + DIST)
            if c1 == 4 and R7 == 4: W.qv += ring_ops(7)
            if c1 == TFL and c1 + DIST < 8: W.qv.append(FL)
            W.qv += post.get(c1, [])
            if c1 == opt.get("t_pv", 4): W.pv = opt.get("pv1", 4)
            W.qv += PW.get(2*c1, [])
            if g.NR == 3:
                if c1 == 7: st.release([2, 3])
                for m in range(4):
                    if c1 == opt.get(f"wo{m}", [2, 4, 6, 6][m]): assert m < 2 or c1 >= 6; W.qv += wo_ops(m)
            elif c1 >= 5:
                r = c1 - 5
                if r not in (WOR, WOR + 1): st.release([2*r + 2, 2*r + 3])
                for hh in range(2):
                    if c1 == opt.get(f"two{hh}", WOR + 5 + hh): W.qv += wo_ops(2*hh) + wo_ops(2*hh + 1)
            W.qv += PW.get(2*c1 + 1, [])
            W.qs += st.drain_ops(opt.get(f"dr{c1}", 0), 1)
            W.qv += st.issue_ops(opt.get(f"is{c1}", {4: 1, 7: 2}.get(c1, 0)))
            n = len(flat)
            if XS(s + 1): W.run(flat, fit(reads(s + 1) + [f for x in XS(s + 1) for f in xreads(x, "xe")], n - opt.get("hx", 0)))
            elif ES and s == 11:
                e(f"s_mov_b32 s{sInv}, 0x3b000000")
                e(f"s_mov_b32 s{sEps}, 0x3727c5ac")
                if XB2: W.run(flat, fit(reads(12) + xreads(15, "xe"), opt.get("f11", n)))
                else: W.run(flat, zipx(fit(prd + reads(12) + xreads(15, "xe"), opt.get("f11", n)), n, opt.get("eo", 10)))
            elif ES and s == 13:
                if opt.get("xrp", 1):
                    k = max([i + 1 for i, o in enumerate(W.qv) if o.grp == "wo"] + [0]) if opt.get("xrp", 1) == 1 else min([i for i, o in enumerate(W.qv) if o.grp == "st"])
                    W.qv[k:k] = sched.get(8, [])
                    W.qv += PW.get(16, []) + PW.get(17, [])
                else: W.qv += PW.get(16, []) + sched.get(8, []) + PW.get(17, [])
                if TFL == 8: W.qv.insert(opt.get("flp", 0), FL)
                R = reads(14) + reads(15); k = opt.get("f13", 2); k0 = opt.get("f130", 0)
                if opt.get("rko", 1): R = R[2:4] + R[0:2] + R[4:6] + R[8:10] + R[6:8] + R[10:]
                for f in R[:k0]: f()
                R = R[k0:]; R = [lambda P=R[i:i+k]: [f() for f in P] for i in range(0, len(R), k)]
                for f in R[:max(0, len(R) - n)]: f()
                EX += [None] * max(0, min(n, len(R)) - opt.get("eo3", 6) - len(EX)) + LX
                W.run(flat, zipx(R[max(0, len(R) - n):], n, opt.get("eo3", 6)))
                if not opt.get("ext", 1):
                    for f in EX: f and f()
                    EX = []
            else: W.run(flat, fit(holes(reads(s + 1), n - opt.get("hm", 0)), n))
        elif ES and s == 10:
            tz(0)
            X = XS(10); k = opt.get("f10", 11); o = max(k, opt.get("so", 8) + 5*len(X))
            pst = fit(reads(11), k) + [None] * (o - k) + [lambda t=t: sel(t) for t in range(5)] + fit(wr, max(3, min(5, 20 + 5*len(X) - o - 5 - opt.get("sg", 2))))
            pre = {0: lambda: a.wait_lg(("r", s, 0)), 4: lambda: a.wait_lg(("r", s, 4))}
            for i, x in enumerate(X): pre[8 + 5*i] = lambda x=x: a.wait_lg(("xe", x, 4))
            if opt.get("tsz"): pre[o + 6] = lambda: tz(1)
            W.run(M[0] + SM + [m for x in X for m in mfmas(x)[0]] + flat[3:], pst, pre)
            loop_end()
        elif ES and s == 12:
            if XB2:
                k = opt.get("xbg", 0)
                W.run(flat, zipx([None] * k + fit(prd + reads(13), opt.get("f12", 7)), 15, opt.get("eo2", 8)),
                      {0: lambda: a.wait_lg(("r", s, 0)), k: lambda: (a.wait_lg([("r", s, 0), "pw"]), e("s_barrier"))})
            else: W.run(flat, zipx(fit(reads(13), opt.get("f12", 15)), 15, opt.get("eo2", 0)), {0: lambda: a.wait_lg(("r", s, 0))})
        elif s < 14:
            L = []
            if opt.get("nostat") and s:
                W.run(flat, reads(s + 1), {0: lambda: a.wait_lg(("r", s, 1)), 6: lambda: a.wait_lg(("r", s, 4))})
                continue
            for t in range(5): L += [SM[t]] + M[t]
            pre = {0: lambda: a.wait_lg(("r", s, 1 if s else 0)), (8 if s else 4): lambda: a.wait_lg(("r", s, 4))}
            for x in XS(s): pre[len(L)] = lambda x=x: a.wait_lg(("xe", x, 4)); L += mfmas(x)[0]
            W.run(L, holes(reads(s + 1), 20 - opt.get("hm2", 3)), pre)
        else:
            if opt.get("tsy") == 1: stamp(g, 11, True)
            pst = reads(15) + [None] + [lambda t=t: sel(t) for t in range(5)]
            pst += [lambda: (wr[0](), wr[1]()), lambda: (wr[2](), wr[3]()), wr[4]]
            W.run(M[0] + SM + flat[3:], pst, {0: lambda: a.wait_lg(("r", s, 0)), 4: lambda: a.wait_lg(("r", s, 4))})
    if not ES: loop_end()
    SM, M = mfmas(15); M = [m for t in M for m in t]
    g.wo_done = 0
    def hoist(pt):
        for nm, k0, k1 in (("hs", 0, min(HK, 8)), ("hs2", 8, HK)):
            if k1 <= k0 or opt.get(nm, 1 if nm == "hs" else 3) != pt: continue
            need = [("wo", m) for m in range(k0 // 4, (k1 + 3) // 4)]
            if pt == 0: W.force(lambda o: getattr(o, "m", None) in need)
            else:
                while any(getattr(o, "m", None) in need for o in a.bg): a.run_bg(1)
            a.wait_vm(need)
            if pt: e("s_barrier")
            if ES and not g.wo_done:
                assert pt
                st.release([8, 9]); a.bg += st.issue_ops(opt.get("is9", 0), True)
            n = opt.get("hn", 2)
            R = [(k, mt, h) for k in range(k0, k1) for mt in range(4) for h in range(2)]
            for i in range(0, len(R), n):
                a.bg2.append(lambda P=R[i:i+n]: [wo_rd(k, mt, h, ar(16*g.WG[k] + 4*mt + 2*h, 2)) for k, mt, h in P])
            a.interval2 = opt.get("ih", 32); g.wo_done = k1
    def normT(ty, t, dst):
        r = acc[ty][t]; nl = NL[t]
        for h in range(2):
            e(f"v_pk_mul_f32 {vr(tmp+2*h,2)}, {vr(cs[ty]+2*h,2)}, {vr(nl,2)} op_sel:[0,0] op_sel_hi:[1,0]")
        for h in range(2):
            e(f"v_pk_fma_f32 {vr(r+2*h,2)}, {vr(r+2*h,2)}, {vr(nl,2)}, {vr(tmp+2*h,2)} op_sel:[0,1,0] op_sel_hi:[1,1,1]")
        for h in range(2):
            e(f"v_cvt_pk_bf16_f32 v{dst+h}, v{r+2*h}, v{r+2*h+1}")
    def normV(t):
        r = acc[2][t]
        for h in range(2):
            e(f"v_pk_mul_f32 {vr(tmp+2*h,2)}, {vr(NMr[t]+2*h,2)}, {vr(csV,2)} op_sel:[0,0] op_sel_hi:[1,0]")
        for h in range(2):
            e(f"v_pk_fma_f32 {vr(r+2*h,2)}, {vr(r+2*h,2)}, {vr(Rr[t]+2*h,2)}, {vr(tmp+2*h,2)}")
        for h in range(2):
            e(f"v_cvt_pk_bf16_f32 v{Vp+2*t+h}, v{r+2*h}, v{r+2*h+1}")
    def smf(u):
        e(f"v_mfma_f32_16x16x16_bf16 {vr(Sc[u-1],4)}, {vr(Kp+2*u,2)}, {vr(Qp+2*(u-1),2)}, {vr(vBias,4)}")
        e(f"v_mfma_f32_16x16x16_bf16 {vr(Sp[u-1],4)}, {vr(Kp+2*u-2,2)}, {vr(Qp+2*(u-1),2)}, {vr(vBias1 if u == 1 else vBias,4)}")
    if ES:
        if opt.get("tsl"): stamp(g, 2)
        for r in [sXs, sWs, sR7, sH, sH + 1]: S.release(r)
        for t in range(5): V.release(XF[1][t], 4); V.release(Dg[t])
        for t in range(3): V.release(WF[1][t], 4)
        for r in vXa[0] + vXa[1] + vXz + vHa + vWa[0] + vWa[1] + vXo + vWo + [vHo, vPw, vPr, vPr2]: V.release(r)
        Kp = V.alloc(10); Qp = V.alloc(8); cs = [V.alloc(4), V.alloc(4)]; csV = V.alloc(2); tmp = V.alloc(4)
        Sc = [acc[0][0]]; Sp = [V.alloc(4)]
        def plainT(ty, t, dst):
            r = acc[ty][t]; nl = NL[t]
            return [f"v_mul_f32 v{tmp+i}, v{cs[ty]+i}, v{nl}" for i in range(4)] + [f"v_fma_f32 v{r+i}, v{r+i}, v{nl+1}, v{tmp+i}" for i in range(4)] + \
                   [f"v_cvt_pk_bf16_f32 v{dst+h}, v{r+2*h}, v{r+2*h+1}" for h in range(2)]
        bc = lambda ty: [f"v_mov_b32_dpp v{cs[ty]+i}, v{acc[ty][0]+i} row_newbcast:0 row_mask:0xf bank_mask:0xf" for i in range(4)]
        RD = opt.get("rd", 5)
        U = [(RD, bc(1), None), (RD + 1, bc(0), None), (RD + 2, [f"v_mov_b32 v{csV}, v{acc[2][0]}", f"v_mov_b32 v{csV+1}, v{acc[2][0]}"], None),
             (RD, plainT(1, 0, Kp), lambda: normT(1, 0, Kp)), (RD, [f"v_permlane32_swap_b32 v{csV}, v{csV+1}"], None)]
        for t in range(1, 5):
            U.append((6*t + RD, plainT(1, t, Kp + 2*t), lambda t=t: normT(1, t, Kp + 2*t)))
            if t > 1: U.append((99 if t > 2 else 0, [lambda t=t: smf(t - 1)], None))
            U.append((6*t + RD + 1, plainT(0, t, Qp + 2*(t-1)), lambda t=t: normT(0, t, Qp + 2*(t-1))))
        cur = []
        def pop(gap, n):
            nonlocal cur
            if EX:
                assert NP and (len(EX) <= len(LX) or gap < RD)
                f = EX.pop(0); f and f(); n -= 2
            while n > 0:
                if not cur:
                    i = next((i for i, u in enumerate(U) if u[0] < 99), None)
                    if i is None or U[i][0] > gap: return
                    cur = list(U.pop(i)[1])
                x = cur.pop(0); e(x) if isinstance(x, str) else x(); n -= 1
        M14 = mfmas(14)[1]; M15 = mfmas(15)[1]
        W.cap = opt.get("capt", 4)
        W.run([m[t][ty] for t in range(5) for m in (M14, M15) for ty in (1, 0, 2)], [lambda i=i: pop(i, opt.get("vn", 3)) for i in range(30)],
              {0: lambda: a.wait_lg(("r", 14, 0)), 3: lambda: a.wait_lg([("r", 15, 0), ("nl", 4), ("xe", 15, 4)])})
        print("loop end: queue", len(W.qv), len(W.qs), "issued", st.nx, "drained", st.ndrained, "units left", len(U), len(cur))
        a.bg = fuse(W.qv) + W.qs
        a.interval = opt.get("iv2", 100); a.last_bg = a.cyc
        a.bg += fuse(PW.get(18, []))
        a.unhold()
        for x in cur: e(x)
        for t in range(3): V.release(WF[0][t], 4)
        V.release(Pq[0], 4)
        if not NP: V.release(Pq[1], 4)
        for r in (vNw, vNw2, vNp): V.release(r)
        Vp = V.alloc(10)
        Sc += [V.alloc(4) for t in range(3)]; Sp += [V.alloc(4) for t in range(3)]
        hoist(1)
        for f in PW.get(28, []): f()
        for _, P, f in U:
            if f: f()
            else:
                for x in P: e(x) if isinstance(x, str) else x()
    else:
        hoist(0)
        P15 = opt.get("p15", 0); NP = opt.get("np0", 0)
        if P15: a.wait_lg(("r", 15, 4)); W.run(M[:P15]); M = M[P15:]
        a.wait_lg(); e("s_barrier")
        stamp(g, 2)
        Pq = [V.alloc(4), V.alloc(4)]
        a.ds(f"ds_read_b128 {vr(Pq[0],4)}, v{vPr} offset:{P_OFF}", "pr")
        a.ds(f"ds_read_b128 {vr(Pq[1],4)}, v{vPr2} offset:{P_OFF+1024}", "pr")
        for hh in range(2):
            if g.NR == 4 and 8 == opt.get(f"two{hh}", WOR + 5 + hh): W.qv += wo_ops(2*hh) + wo_ops(2*hh + 1)
        if g.NR == 3:
            st.release([4, 5])
            for m in range(4):
                if opt.get(f"wo{m}", 0) == 8: W.qv += wo_ops(m)
        if WOR != 2: st.release([8, 9])
        W.qv += PW.get(16, [])
        W.qv += sched.get(8, [])
        W.qv += PW.get(17, [])
        if TFL == 8: W.qv.insert(0, FL)
        W.qv += st.issue_ops(opt.get("is8", 2))
        k = opt.get("q15", 5)
        W.run(M[:k]); M = M[k:]
        cs = [V.alloc(4), V.alloc(4)] if opt.get("cse", 0) else None
        def csb():
            for ty in range(2):
                for i in range(4):
                    e(f"v_mov_b32_dpp v{cs[ty]+i}, v{acc[ty][0]+i} row_newbcast:0 row_mask:0xf bank_mask:0xf")
        if cs: csb()
        a.wait_lg("pr")
        for r in [sRow, sP4, sXs, sWs, sR7, sOrd, sH, sH + 1]:
            if r is not None: S.release(r)
        sInv = S.alloc(); sEps = S.alloc()
        e(f"s_mov_b32 s{sInv}, 0x3b000000")
        e(f"s_mov_b32 s{sEps}, 0x3727c5ac")
        F0, F1 = fin(0), fin(1)
        FF = [f for pr in zip(F0, F1) for f in pr]
        W.run(M, FF[:len(M)])
        for f in FF[len(M):]: f()
        print("loop end: queue", len(W.qv), len(W.qs), "issued", st.nx, "drained", st.ndrained)
        a.bg = fuse(W.qv) + W.qs
        if TFL > 8: a.bg.insert(TFL - 9, FL)
        a.interval = opt.get("iv2", 100); a.last_bg = a.cyc
        a.bg += fuse(PW.get(18, []))
        a.bg += st.drain_ops(opt.get("dr9", 0), 2) + st.issue_ops(opt.get("is9", 0), True)
        a.unhold()
        for i in range(4):
            if i & 1 or not NP: nwr[i]()
        for b in range(2):
            for t in range(5): V.release(XF[b][t], 4)
            for t in range(3): V.release(WF[b][t], 4)
        for t in range(5): V.release(ST[t], 4); V.release(Dg[t])
        NL = [V.alloc(2) for t in range(5 - NP)] + [Pq[1]] * NP
        NMr = [V.alloc(4) for t in range(5)]; Rr = [V.alloc(4) for t in range(5)]
        if NP:
            for i, x in enumerate(PERM):
                for j in (1, 0): e(x.format(*[r + j for r in NL[:4] + [Pq[0]]]))
                if i < 5: nrr[i]()
        else:
            for f in nlr + nrr: f()
        for r in vXa[0] + vXa[1] + vHa + vWa[0] + vWa[1] + vXo + vWo + [vHo, vPw, vPr, vPr2]: V.release(r)
        hoist(1)
        for f in PW.get(28, []): f()
        if not cs: cs = [V.alloc(4), V.alloc(4)]; csV = V.alloc(2); csb()
        else: csV = V.alloc(2)
        e(f"v_mov_b32 v{csV}, v{acc[2][0]}")
        e(f"v_mov_b32 v{csV+1}, v{acc[2][0]}")
        e(f"v_permlane32_swap_b32 v{csV}, v{csV+1}")
        tmp = V.alloc(4)
        Qp = V.alloc(8); Kp = V.alloc(10); Vp = V.alloc(10)
        for q in Pq[:2-NP]: V.release(q, 4)
        for r in (vNw, vNw2, vNp): V.release(r)
        Sc = [acc[0][0]] * NP + [V.alloc(4) for t in range(4 - NP)]; Sp = [V.alloc(4) for t in range(4)]
        a.wait_lg(("nl", 0)); normT(1, 0, Kp)
        for t in range(1, 5):
            a.wait_lg(("nl", t))
            normT(1, t, Kp + 2*t); normT(0, t, Qp + 2*(t-1))
            if t > 1:
                u = t - 1
                e(f"v_mfma_f32_16x16x16_bf16 {vr(Sc[u-1],4)}, {vr(Kp+2*u,2)}, {vr(Qp+2*(u-1),2)}, {vr(vBias,4)}")
                e(f"v_mfma_f32_16x16x16_bf16 {vr(Sp[u-1],4)}, {vr(Kp+2*u-2,2)}, {vr(Qp+2*(u-1),2)}, {vr(vBias1 if u == 1 else vBias,4)}")
    hoist(2)
    for f in PW.get(27, []): f()
    a.wait_lg(("nr", 0)); normV(0)
    u = 4
    e(f"v_mfma_f32_16x16x16_bf16 {vr(Sc[u-1],4)}, {vr(Kp+2*u,2)}, {vr(Qp+2*(u-1),2)}, {vr(vBias,4)}")
    e(f"v_mfma_f32_16x16x16_bf16 {vr(Sp[u-1],4)}, {vr(Kp+2*u-2,2)}, {vr(Qp+2*(u-1),2)}, {vr(vBias,4)}")
    a.wait_lg(("nr", 2)); normV(1); normV(2)
    mx = [V.alloc() for t in range(4)]
    for t in range(4):
        for i in range(4):
            e(f"v_cndmask_b32 v{Sc[t]+i}, v{Sp[t]+i}, v{Sc[t]+i}, {sr(sLe[i],2)}")
        e(f"v_max3_f32 v{mx[t]}, v{Sc[t]}, v{Sc[t]+1}, v{Sc[t]+2}")
        e(f"v_max_f32 v{mx[t]}, v{mx[t]}, v{Sc[t]+3}")
    a.wait_lg(("nr", 4))
    for f in PW.get(24, []): f()
    hoist(3)
    e(f"v_permlane32_swap_b32 v{mx[0]}, v{mx[1]}")
    e(f"v_permlane32_swap_b32 v{mx[2]}, v{mx[3]}")
    e(f"v_max_f32 v{mx[0]}, v{mx[0]}, v{mx[1]}")
    e(f"v_max_f32 v{mx[2]}, v{mx[2]}, v{mx[3]}")
    normV(3)
    e(f"v_permlane16_swap_b32 v{mx[0]}, v{mx[2]}")
    sC = S.alloc(); sNC = S.alloc()
    cbits = f32bits(0.25 * math.log2(math.e))
    e(f"s_mov_b32 s{sC}, {cbits:#x}")
    e(f"s_mov_b32 s{sNC}, {cbits | 0x80000000:#x}")
    e(f"v_max_f32 v{mx[0]}, v{mx[0]}, v{mx[2]}")
    e(f"v_mul_f32 v{mx[0]}, s{sNC}, v{mx[0]}")
    e(f"v_mov_b32 v{mx[2]}, v{mx[0]}")
    normV(4)
    e(f"v_permlane16_swap_b32 v{mx[0]}, v{mx[2]}")
    e(f"v_mov_b32 v{mx[1]}, v{mx[0]}")
    e(f"v_mov_b32 v{mx[3]}, v{mx[2]}")
    e(f"v_permlane32_swap_b32 v{mx[0]}, v{mx[1]}")
    e(f"v_permlane32_swap_b32 v{mx[2]}, v{mx[3]}")
    for i in range(2): e(f"v_mov_b32 v{vOne+i}, {(((127 + SCL) << 7) * 0x10001):#x}")
    hoist(4)
    for f in PW.get(26, []): f()
    Pk = NL[:4]
    Ot = Sc; Ls = acc[0][1:5]
    for t in range(4):
        for i in range(4): e(f"v_fma_f32 v{Sc[t]+i}, v{Sc[t]+i}, s{sC}, v{mx[t]}")
        for i in range(4): e(f"v_exp_f32 v{Sc[t]+i}, v{Sc[t]+i}")
        for h in range(2): e(f"v_cvt_pk_bf16_f32 v{Pk[t]+h}, v{Sc[t]+2*h}, v{Sc[t]+2*h+1}")
        for h in range(2):
            e(f"v_and_b32 v{Sp[t]+h}, v{Pk[t]+h}, v{vMp+h}")
            e(f"v_and_b32 v{Sp[t]+2+h}, v{Pk[t]+h}, v{vMc+h}")
        e(f"v_mfma_f32_16x16x16_bf16 {vr(Ls[t],4)}, {vr(vOne,2)}, {vr(Pk[t],2)}, 0")
        e(f"v_mfma_f32_16x16x32_bf16 {vr(Ot[t],4)}, {vr(Vp+2*t,4)}, {vr(Sp[t],4)}, 0")
    left = a.bg; a.bg = []
    if opt.get("hstop", 1): g.left2 = a.bg2; a.bg2 = []
    flag_check(g)
    Op_ = [acc[1][0], acc[1][1]]
    for t in range(4):
        e(f"v_rcp_f32 v{Ls[t]}, v{Ls[t]}")
        for h in range(2):
            e(f"v_pk_mul_f32 {vr(Ot[t]+2*h,2)}, {vr(Ot[t]+2*h,2)}, {vr(Ls[t],2)} op_sel:[0,0] op_sel_hi:[1,0]")
        for h in range(2):
            e(f"v_cvt_pk_bf16_f32 v{Op_[t>>1]+2*(t&1)+h}, v{Ot[t]+2*h}, v{Ot[t]+2*h+1}")
        if t & 1:
            o = Op_[t >> 1]
            e(f"v_permlane32_swap_b32 v{o}, v{o+2}")
            e(f"v_permlane32_swap_b32 v{o+1}, v{o+3}")
            for i in range(4): e(f"v_xor_b32 v{o+i}, v{o+i}, v{g.vTg+i}")
            so = "0" if t == 1 else f"s{g.sO2}"
            store_sel(g, [f"buffer_store_dwordx4 {vr(o,4)}, v{g.vOa}, {sr(g.sWS,4)}, {so} offen"], "ost")
    stamp(g, 3)
    if not opt.get("hstop", 1): g.left2 = a.bg2; a.bg2 = []
    print("P1 end: bg left", len(left), len(g.left2), "issued", st.nx, "drained", st.ndrained)
    st.finish()
    a.bg = [f for f in left if getattr(f, "grp", None) != "st"]; a.run_bg()
    e("s_nop 1")
    keep = {0, *g.vT, g.vJ, vL, vN, vG} | set(g.keepv)
    for i in range(256):
        V.free[i] = i not in keep
    for r in ([sInv, sEps, sC, sNC, sOo, g.sO2] + ([sWr17] if WR else [])): S.release(r)
    for r in sM + sLe: S.release(r, 2)

def allreduce2(g, s, q, t):
    e = g.a.e
    e(f"v_permlane32_swap_b32 v{s}, v{q}")
    e(f"v_add_f32 v{s}, v{s}, v{q}")
    e(f"v_mov_b32 v{t}, v{s}")
    e(f"v_permlane16_swap_b32 v{s}, v{t}")
    e(f"v_add_f32 v{s}, v{s}, v{t}")
    e(f"v_mov_b32 v{q}, v{s}")
    e(f"v_permlane32_swap_b32 v{s}, v{q}")

def phase2(g):
    a, V, S = g.a, g.V, g.S; e = a.e; st = g.st; opt = g.opt
    vT0, vT1, vT2, vT3 = g.vT; vL, vN, vG = g.vL, g.vN, g.vG
    ws = sr(g.sWS, 4); sT, sT2 = g.sT, g.sT2
    X = opt.get("tsx")
    KA = len(g.WG)
    g.cp(19)
    if opt.get("ia", 0): st.finish(); st.upto(opt.get("ia", 0))
    vOl = V.alloc(); vOi = V.alloc(); vP = V.alloc(4); vC = V.alloc()
    e(f"s_lshl_b32 s{sT}, s{g.sT2i}, 14")
    e(f"v_lshrrev_b32 v{vT0}, 1, v{vL}")
    if opt.get("in2", 0): e(f"v_or_b32 v{vT0}, {opt['in2']}, v{vT0}")
    e(f"v_lshl_add_u32 v{vOi}, v{vT0}, 9, s{sT}")
    e(f"v_and_b32 v{vT0}, 3, v{vL}")
    e(f"v_lshl_add_u32 v{vOi}, v{vT0}, 4, v{vOi}")
    e(f"v_lshl_add_u32 v{vOl}, v{vL}, 4, s{sT}")
    OF = V.alloc(64, 4)
    sO = S.alloc()
    def ldline(k): return f"buffer_load_dwordx4 {vr(OF+4*k,4)}, v{vOl}, {ws}, s{sO} offen offset:{(k%4)*1024} sc1"
    def lds(n):
        L = [f"buffer_load_dwordx4 {vr(vP,4)}, v{vOi}, {ws}, 0 offen sc1"]
        for k in range(n):
            if k % 4 == 0: L.append(g.so_line(sO, k // 4))
            L.append(ldline(k))
        return L
    SP = opt.get("sp2", 4); PEEL = opt.get("peel", 1)
    PL = []
    if PEEL:
        k = -1
        for x in lds(16):
            if x[0] == "s": pend = x
            else: PL.append(lambda x=x, k=k, p=(pend if k % 4 == 0 else None): (p and e(p), a.vmem(x, ("of", k) if k >= 0 else "poll"))); k += 1
    def pl(n):
        for _ in range(n):
            if PL: PL.pop(0)()
    pl(opt.get("pl0", 0))
    st.finish(); st.upto(opt.get("ia2", 0))
    if X == 1: stamp(g, 9, True)
    sScl = S.alloc(); g.sScl = sScl
    e(f"s_mov_b32 s{sScl}, {f32bits(2.0**-SCL):#x}")
    for f in g.left2: f()
    vWa = g.vWq
    g.vXr = V.alloc(8)
    e(f"v_and_b32 v{vT1}, 14, v{vN}")
    e(f"v_xor_b32 v{vT0}, v{vG}, v{vT1}")
    e(f"v_lshlrev_b32 v{vT0}, 3, v{vT0}")
    e(f"v_lshl_add_u32 v{vT0}, v{vN}, 7, v{vT0}")
    e(f"v_add_u32 v{vT0}, s{g.sW2k}, v{vT0}")
    a.wait_vm("xr")
    for mt in range(4):
        if mt: e(f"v_xor_b32 v{vT1}, {32*mt}, v{vT0}")
        a.ds(f"ds_read_b64 {vr(g.vXr+2*mt,2)}, v{vT1 if mt else vT0} offset:{L_XR}", "xr")
    S.release(g.sW2k)
    a.wait_vm([("wo", m) for m in range(4)]); a.wait_lg("xr")
    if X == 1: stamp(g, 10, True)
    st.bar(opt.get("n3", 0))
    WS0 = g.L_WO // 16384
    st.release([1] + [WS0 + (i ^ g.WX) for i in range(g.wo_done // 4)])
    AF = {k: V.alloc(16, 4) for k in range(KA, 16)}
    def af(k, o, n): return vr(AF[k] + o, n) if k >= KA else ar(16*g.WG[k] + o, n)
    acc = V.alloc(16, 4)
    g.bq = g.vXr; g.vb = V.alloc(); g.vS4 = V.alloc(); g.sX1 = S.alloc(); g.sX0 = S.alloc()
    def accinit():
        for r in range(8):
            e(f"v_lshlrev_b32 v{acc+2*r}, 16, v{g.vXr+r}")
            e(f"v_and_b32 v{acc+2*r+1}, 0xffff0000, v{g.vXr+r}")
        for r in range(16): e(f"v_mul_f32 v{acc+r}, s{sScl}, v{acc+r}")
    def addrs():
        g.vHa = V.alloc(); g.vD["w2"] = V.alloc(4, 1)
        e(f"s_lshl_b32 s{sT}, s{g.sLo}, 7")
        e(f"s_add_u32 s{sT}, s{sT}, s{g.sT2i}")
        e(f"s_lshl_b32 s{sT}, s{sT}, 11")
        e(f"s_add_u32 s{sT}, s{sT}, {WS_HH}")
        e(f"v_lshl_add_u32 v{g.vHa}, v{vL}, 4, s{sT}")
        dma_lane(g, vT0)
        e(f"v_lshrrev_b32 v{vT1}, 3, v{vL}")
        e(f"s_mul_i32 s{sT}, s{g.sKq}, 14")
        e(f"s_and_b32 s{sT2}, s{g.sW}, 1")
        e(f"s_add_u32 s{sT}, s{sT}, s{sT2}")
        e(f"s_lshl_b32 s{sT}, s{sT}, 17")
        e(f"s_lshl_b32 s{sT2}, s{g.sHi}, 7")
        e(f"s_add_u32 s{sT}, s{sT}, s{sT2}")
        e(f"v_lshl_add_u32 v{vT0}, v{vT0}, 4, s{sT}")
        e(f"v_lshl_add_u32 v{g.vD['w2']}, v{vT1}, 12, v{vT0}")
        for p in range(1, 4): e(f"v_add_u32 v{g.vD['w2']+p}, {p*(8*4096 - 1024)}, v{g.vD['w2']}")
        e(f"s_lshr_b32 s{g.sX1}, s{g.sW}, 1")
        e(f"s_lshl_b32 s{g.sX1}, s{g.sX1}, 6")
        e(f"s_and_b32 s{g.sX0}, s{g.sW}, 1")
        e(f"s_lshl_b32 s{g.sX0}, s{g.sX0}, 6")
    def biases():
        e(f"v_lshrrev_b32 v{vT0}, 5, v{vL}")
        e(f"s_min_u32 s{sT}, s{g.sFt}, 27")
        e(f"s_lshl_b32 s{sT}, s{sT}, 7")
        e(f"s_add_u32 s{sT}, s{sT}, s{g.sX1}")
        e(f"v_lshl_add_u32 v{vT0}, v{vT0}, 3, s{sT}")
        for k in range(4):
            a.vmem(f"global_load_dwordx2 {vr(g.bq+2*k,2)}, v{vT0}, {sr(g.sB1,2)} offset:{16*k}", "b1")
        e(f"v_and_b32 v{g.vS4}, 31, v{vL}")
        e(f"s_lshr_b32 s{sT}, s{g.sX1}, 1")
        e(f"v_add_u32 v{g.vS4}, s{sT}, v{g.vS4}")
        e(f"s_lshl_b32 s{sT2}, s{g.sHi}, 7")
        e(f"v_lshl_add_u32 v{vT0}, v{g.vS4}, 1, s{sT2}")
        a.vmem(f"global_load_ushort v{g.vb}, v{vT0}, {sr(g.sB2,2)}", "b2")
    g.biases = biases
    MWN = opt.get("mwn", 0)
    vMw = vT3
    def mw_addr():
        nonlocal vMw
        if not MWN: return
        NWV = opt.get("mww", 112); LP = -(-1024*MWN // NWV)
        if opt.get("mwt", 0) < 2: vMw = V.alloc()
        e(f"s_lshr_b32 s{sT}, s2, 3")
        e(f"s_lshl2_add_u32 s{sT}, s{sT}, s{g.sW}")
        e(f"s_mul_i32 s{sT}, s{sT}, {LP}")
        e(f"v_min_u32 v{vT0}, {LP-1}, v{vL}")
        e(f"v_add_u32 v{vT0}, s{sT}, v{vT0}")
        e(f"v_min_u32 v{vT0}, {1024*MWN-1}, v{vT0}")
        e(f"v_bfe_u32 v{vT1}, v{vT0}, 8, 2")
        e(f"v_mul_u32_u24 v{vT1}, 7, v{vT1}")
        e(f"v_lshrrev_b32 v{vT2}, 10, v{vT0}")
        e(f"v_add3_u32 v{vT1}, v{vT1}, v{vT2}, {g.niw}")
        e(f"v_bfe_u32 v{vT2}, v{vT0}, 2, 6")
        e(f"v_lshl_add_u32 v{vT1}, v{vT1}, 6, v{vT2}")
        e(f"s_and_b32 s{sT}, s2, 7")
        e(f"s_lshl_b32 s{sT}, s{sT}, 9")
        e(f"v_lshl_add_u32 v{vMw}, v{vT1}, 12, s{sT}")
        e(f"v_and_b32 v{vT0}, 3, v{vT0}")
        e(f"v_lshl_add_u32 v{vMw}, v{vT0}, 7, v{vMw}")
        e(f"v_add_u32 v{g.vIW}, {MWN << 18}, v{g.vIW}")
        g.niw += MWN
    def mw(t):
        if MWN and opt.get("mwt", 0) == t: a.vmem(f"buffer_load_dword v{g.vJ}, v{vMw}, {sr(g.sW2,4)}, 0 offen", "pf"); t >= 2 or V.release(vMw)
    extra = [None, accinit] + ([mw_addr] if opt.get("mwt", 0) >= 2 else [])
    PE = opt.get("pe", -1); assert PE < 0 or not PEEL
    if PE >= 0: sFl = S.alloc(); labE = newlabel(g, "oe"); nvm = len(a.vm)
    TLK = opt.get("tl", 0)
    PCL = PE >= 0 and opt.get("pc", PE + 3) >= 16 - TLK - g.wo_done
    assert not TLK or (PCL and opt.get("b2", 0) != 1)
    DR = [(k, mt, h) for k in range(16 - TLK, 16) for mt in range(4) for h in range(2)]
    def probe():
        a.hold()
        e(f"s_waitcnt vmcnt({SP})")
        tag_check(g, [vP], vC, e)
        if PCL: e(f"s_cbranch_vccz {labE}")
        else:
            e(f"s_mov_b32 s{sFl}, 0")
            e(f"s_cbranch_vccnz {labE}")
            for x in lds(16)[len(lds(SP)):]: e(x)
            e(f"s_mov_b32 s{sFl}, 1")
            a.label(labE)
        a.unhold()
    for k in range(g.wo_done, 16 - TLK):
        if PE >= 0 and k - g.wo_done == PE:
            a.hold()
            for x in lds(SP): e(x)
            a.unhold()
        if PE >= 0 and k - g.wo_done == opt.get("pc", PE + 3): probe()
        for mt in range(4):
            for h in range(2): g.wo_rd(k, mt, h, af(k, 4*mt+2*h, 2))
            if k - g.wo_done >= opt.get("plk", 0) and (mt & 1 or opt.get("pl2", 0)): pl(1)
        if extra:
            f = extra.pop(0)
            if f: f()
        if st.nx < opt.get("ib", 0) and st.can_issue(): st.issue(1)
    for f in extra:
        if f: f()
    pl(99)
    st.upto(opt.get("ib", 0))
    st.drain(opt.get("da", 0))
    if opt.get("b2", 0) == 1 and g.wo_done < 16:
        a.wait_lg(("wf", 15)); e("s_barrier")
        st.release([WS0 + (i ^ g.WX) for i in range(g.wo_done // 4, 4)])
    if X == 1: stamp(g, 11, True)
    a.hold()
    if PEEL:
        a.wait_vm("poll")
        tag_check(g, [vP], vC, e)
        lab = newlabel(g, "op")
        e(f"s_cbranch_vccnz {lab}")
        a.label(lab + "_b")
        T = [lab + ":"] + ["  " + x for x in lds(SP)] + [f"  s_waitcnt vmcnt({SP})"]
        tag_check(g, [vP], vC, lambda x: T.append("  " + x))
        T += [f"  s_cbranch_vccz {lab}_k", f"  s_add_u32 s{g.sSpin}, s{g.sSpin}, 1", f"  s_cmp_lt_u32 s{g.sSpin}, {SPIN}", f"  s_cbranch_scc1 {lab}", lab + "_k:"]
        if opt.get("ph", 0) < 2: T += ["  " + x for x in lds(16)[len(lds(SP)):]]
        else: T += ["  s_waitcnt vmcnt(0)"]
        nb = len(a.vm) - 1 - a._cnt(a.vm, ("of", 15))
        T += [f"  buffer_load_dword v{g.vJ}, v{vOl}, {ws}, 0 offen" for _ in range(nb)]
        T += [f"  s_branch {lab}_b"]
        if opt.get("ph", 0): g.hot += T
        else: a.tail += T
    else:
        def body():
            k = -1
            for x in lds(SP):
                if x[0] == "s": e(x)
                else: a.vmem(x, ("of", k) if k >= 0 else "poll"); k += 1
            a.wait_vm("poll")
            tag_check(g, [vP], vC, e)
        if PE >= 0:
            assert len(a.vm) == nvm
            if PCL: probe()
            else:
                e(f"s_cmp_eq_u32 s{sFl}, 1")
                e(f"s_cbranch_scc1 {labE}_k")
            S.release(sFl)
        spin_loop(g, "op", body)
        if PCL: a.label(labE)
        for k in range(SP, 16):
            if k % 4 == 0: e(g.so_line(sO, k // 4))
            a.vmem(ldline(k), ("of", k))
            if k >= SP + opt.get("tl0", 0):
                for _ in range(-(-len(DR) // (16 - k))): k_, mt, h = DR.pop(0); g.wo_rd(k_, mt, h, af(k_, 4*mt+2*h, 2))
        if PE >= 0: a.label(labE + "_k")
    stamp(g, 4)
    for f in g.PW.get(20, []): f()
    g.cp(20)
    mw(2)
    st.upto(opt.get("ig", 0))
    mw(3)
    W = Weave(g); W.pv = opt.get("pv2", 4); W.cap = opt.get("cap2", 2)
    W.qs += st.drain_ops(opt.get("db", 0), 1)
    W.qv += st.issue_ops(opt.get("ic", 0))
    def check(k):
        L = []
        tag_check(g, [OF + 4*k, OF + 4*k + 4], vC, L.append)
        def fin():
            verify_tail(g, [OF + 4*k, OF + 4*k + 4], vC, [g.so_line(sO, k // 4), ldline(k), ldline(k + 1)], opt.get("vh", 0))
        CW = opt.get("cw", 2)
        ops = [lambda: (a.wait_vm(("of", k + 1)), e(L[0]))]
        for i in range(1, len(L), CW): ops.append(lambda i=i: [e(x) for x in L[i:i+CW]])
        return ops + [fin]
    for f in check(0): f()
    for k in range(0, 16, 2):
        a.wait_lg(("wf", k + 1))
        M = [lambda mt=mt, k=k: e(f"v_mfma_f32_16x16x32_bf16 {vr(acc+4*mt,4)}, {af(k, 4*mt, 4)}, {vr(OF+4*k,4)}, {vr(acc+4*mt,4)}") for k in (k, k + 1) for mt in range(4)]
        C = check(k + 2) if k + 2 < 16 else []
        W.run(M, [None] * (8 - len(C)) + C if C else [])
        st.busy -= {g.WG[j] for j in (k - 2, k - 1) if 0 <= j < KA}
    print("P2 loop end: queue", len(W.qv), len(W.qs), st.state())
    S.release(sO)
    stamp(g, 5)
    V.release(OF, 64)
    for r in AF.values(): V.release(r, 16)
    for r in vWa + [vOl, vOi]: V.release(r)
    st.busy = set()
    sm = V.alloc(2); sq = V.alloc(2); stt = V.alloc(4)
    sNc = S.alloc()
    e(f"s_lshr_b32 s{sNc}, s{g.sNon}, 4")
    e(f"v_mov_b32 v{stt+2}, s{sNc}")
    e(f"v_pk_add_f32 {vr(sm,2)}, {vr(acc,2)}, {vr(acc+2,2)}")
    e(f"v_pk_mul_f32 {vr(sq,2)}, {vr(acc,2)}, {vr(acc,2)}")
    e(f"v_pk_fma_f32 {vr(sq,2)}, {vr(acc+2,2)}, {vr(acc+2,2)}, {vr(sq,2)}")
    for r in range(2, 8):
        e(f"v_pk_add_f32 {vr(sm,2)}, {vr(sm,2)}, {vr(acc+2*r,2)}")
        e(f"v_pk_fma_f32 {vr(sq,2)}, {vr(acc+2*r,2)}, {vr(acc+2*r,2)}, {vr(sq,2)}")
    e(f"v_add_f32 v{stt}, v{sm}, v{sm+1}")
    e(f"v_add_f32 v{stt+1}, v{sq}, v{sq+1}")
    allreduce2(g, stt, stt + 1, sm)
    store_sel(g, [f"buffer_store_dwordx3 {vr(stt,3)}, v{g.vSa}, {ws}, 0 offen"], "st")
    a.unhold()
    g.cp(21)
    for f in g.PW.get(21, []): f()
    st.finish()
    g.vTB = [[V.alloc(), V.alloc()] for _ in range(3)]
    for b in range(3):
        for p in range(2): e(f"v_xor_b32 v{g.vTB[b][p]}, 4096, v{g.vTA[b][p]}")
    st.c1 = True
    if opt.get("b5", -1) >= 0: st.bar(opt["b5"])
    DC = st.ndrained + opt.get("dc", 2)
    pace(g, opt.get("il5", 8), DC, opt.get("iv5", 0), opt.get("lag5", 8))
    addrs()
    T = g.vTg; g.vTn = T + 2; g.t64 = True
    e(f"v_lshrrev_b32 v{T+1}, 1, v{T+1}")
    e(f"v_lshrrev_b32 v{T+3}, 1, v{T+3}")
    e(f"v_or_b32 v{T}, v{T}, v{T+1}")
    e(f"v_or_b32 v{T+1}, v{T+2}, v{T+3}")
    e(f"v_not_b32 v{T+2}, v{T}")
    e(f"v_not_b32 v{T+3}, v{T+1}")
    e(f"v_lshl_add_u64 {vr(T+2,2)}, {vr(T+2,2)}, 0, 1")
    e(f"s_mov_b32 s{g.sTM}, {TMASK2:#x}")
    e(f"s_mov_b32 s{sScl}, {f32bits(2.0**-SC2):#x}")
    if opt.get("mwt", 0) < 2: mw_addr()
    def wo_free(bar=True):
        if bar: st.finish(); st.bar(opt.get("n7", 0))
        st.release([WS0 + (i ^ g.WX) for i in range(g.wo_done // 4, 4)])
    g.wo_free = wo_free
    if opt.get("b2", 0) == 0 and g.wo_done < 16: wo_free()
    st.upto(opt.get("id", 0))
    if opt.get("be", 0): biases()
    hp = V.alloc(8)
    for r in range(8): e(f"v_cvt_pk_bf16_f32 v{hp+r}, v{acc+2*r}, v{acc+2*r+1}")
    e(f"v_and_b32 v{vT1}, 14, v{vN}")
    e(f"v_xor_b32 v{vT0}, v{vG}, v{vT1}")
    e(f"v_lshlrev_b32 v{vT0}, 3, v{vT0}")
    e(f"s_lshr_b32 s{sT}, s{g.sX1}, 3")
    e(f"s_add_u32 s{sT}, s{sT}, s{g.sW4k}")
    e(f"v_xor_b32 v{vT0}, s{sT}, v{vT0}")
    e(f"v_lshl_add_u32 v{vT0}, v{vN}, 7, v{vT0}")
    for mt in range(4):
        if mt: e(f"v_xor_b32 v{vT1}, {32*mt}, v{vT0}")
        a.ds(f"ds_write_b64 v{vT1 if mt else vT0}, {vr(hp+2*mt,2)} offset:2048", "hw")
    vTw = V.alloc(); vTw2 = V.alloc(); TA = [V.alloc(), V.alloc()]
    SWZ = opt.get("swz", 0)
    if SWZ:
        vTx = V.alloc(4, 1)
        e(f"v_bfe_u32 v{vT0}, v{vN}, 1, 1")
        e(f"v_lshrrev_b32 v{vT1}, 2, v{vN}")
        e(f"v_lshl_add_u32 v{vT0}, v{vT0}, 2, v{vT1}")
        e(f"v_and_b32 v{vT1}, 1, v{vN}")
        e(f"v_lshl_add_u32 v{vT0}, v{vT0}, 1, v{vT1}")
        e(f"v_xor_b32 v{vT0}, v{vT0}, v{vG}")
        e(f"v_lshl_add_u32 v{vT0}, v{vT0}, 3, s{g.sW4k}")
        e(f"v_lshl_add_u32 v{vTw}, v{vN}, 7, v{vT0}")
        e(f"v_xor_b32 v{vTw2}, 64, v{vTw}")
        e(f"v_xor_b32 v{vTx}, 32, v{vTw}")
        e(f"v_xor_b32 v{vTx+1}, 32, v{vTw2}")
        e(f"v_bfe_u32 v{vT0}, v{vN}, 2, 1")
        e(f"v_and_b32 v{vT1}, 2, v{vG}")
        e(f"v_or_b32 v{vT0}, v{vT0}, v{vT1}")
        e(f"v_lshl_add_u32 v{vT0}, v{vT0}, 3, s{g.sX1}")
        e(f"v_xor_b32 v{TA[0]}, v{vT0}, v{g.vTA[0][0]}")
        e(f"v_xor_b32 v{TA[1]}, 64, v{TA[0]}")
        for dh in range(2): e(f"v_xor_b32 v{vTx+2+dh}, 32, v{TA[dh]}")
    else:
        e(f"v_bfe_u32 v{vT0}, v{vN}, 1, 1")
        e(f"v_lshlrev_b32 v{vT0}, 6, v{vT0}")
        e(f"v_lshl_add_u32 v{vT0}, v{vG}, 3, v{vT0}")
        e(f"v_lshl_add_u32 v{vT0}, v{vN}, 7, v{vT0}")
        e(f"v_add_u32 v{vTw}, s{g.sW4k}, v{vT0}")
        e(f"v_xor_b32 v{vTw2}, 64, v{vTw}")
        e(f"v_xor_b32 v{TA[0]}, s{g.sX1}, v{g.vTA[0][0]}")
        e(f"v_xor_b32 v{TA[1]}, 64, v{TA[0]}")
    vSl = V.alloc(); pp = V.alloc(8)
    e(f"v_lshlrev_b32 v{vT0}, 4, v{vN}")
    e(f"v_lshl_add_u32 v{vT0}, v{vG}, 9, v{vT0}")
    e(f"v_add_u32 v{vSl}, s{g.sStb}, v{vT0}")
    sInv = S.alloc(); sEps = S.alloc(); sEpS = S.alloc()
    e(f"s_mov_b32 s{sInv}, 0x3b000000")
    if opt.get("r1", 0):
        vEe = V.alloc()
        e(f"s_mov_b32 s{sEps}, {f32bits(1.0 + 1e-5):#x}")
        e(f"v_mov_b32 v{vEe}, {f32bits(1e-10 * 2.0**(-2*SCL)):#x}")
    else:
        e(f"s_mov_b32 s{sEps}, 0x3727c5ac")
        e(f"s_mov_b32 s{sEpS}, {0x3727c5ac - (2*SCL << 23):#x}")
    SE = opt.get("se", 0); nse = 0
    sl_ = [f"buffer_load_dwordx3 {vr(pp+4*i,3)}, v{vSl}, {ws}, 0 offen offset:{256*i} sc1" for i in range(2)]
    while st.ndrained < DC and st.can_drain():
        nse += 1
        if nse == SE:
            for x in sl_: e(x)
        a.hold(); st.drain_op(2); a.unhold()
        if a.filler and a.cyc - a.last_bg >= a.interval: a.hold(); st.tick(opt.get("il5", 8), 0); a.unhold(); a.last_bg = a.cyc
    pace(g, 0, 0, 0)
    if opt.get("wack", 0): a.wait_vm("st")
    def body():
        a.vmem(f"buffer_load_dwordx3 {vr(pp,3)}, v{vSl}, {ws}, 0 offen sc1", "sp")
        a.vmem(f"buffer_load_dwordx3 {vr(pp+4,3)}, v{vSl}, {ws}, 0 offen offset:256 sc1", "sp")
        a.wait_vm()
        e(f"v_xor_b32 v{vT0}, s{sNc}, v{pp+2}")
        e(f"v_xor_b32 v{vT1}, s{sNc}, v{pp+6}")
        e(f"v_or_b32 v{vT0}, v{vT0}, v{vT1}")
        e(f"v_cmp_ne_u32 vcc, 0, v{vT0}")
    if SE:
        assert nse >= SE
        labS = newlabel(g, "se")
        a.hold()
        e("s_waitcnt vmcnt(0)")
        e(f"v_xor_b32 v{vT0}, s{sNc}, v{pp+2}")
        e(f"v_xor_b32 v{vT1}, s{sNc}, v{pp+6}")
        e(f"v_or_b32 v{vT0}, v{vT0}, v{vT1}")
        e(f"v_cmp_ne_u32 vcc, 0, v{vT0}")
        e(f"s_cbranch_vccz {labS}")
        a.unhold()
    spin_loop(g, "st", body)
    if SE: a.label(labS)
    stamp(g, 6)
    for f in g.PW.get(25, []): f()
    mw(1)
    st.upto(opt.get("ie", 0))
    pace(g, opt.get("il6", 8), opt.get("dm6", 0), opt.get("iv6", 0), opt.get("lag5", 8))
    e(f"v_pk_add_f32 {vr(stt,2)}, {vr(pp,2)}, {vr(pp+4,2)}")
    allreduce2(g, stt, stt + 1, sm)
    m, var, r1, t = stt, stt + 1, sm, sm + 1
    e(f"v_mul_f32 v{m}, s{sInv}, v{m}")
    e(f"v_mul_f32 v{var}, s{sInv}, v{var}")
    e(f"v_fma_f32 v{var}, -v{m}, v{m}, v{var}")
    e(f"v_max_f32 v{var}, 0, v{var}")
    if opt.get("r1", 0):
        e(f"v_fma_f32 v{t}, v{var}, s{sEps}, v{vEe}")
        e(f"v_rsq_f32 v{t}, v{t}")
        e(f"v_mul_f32 v{sq+1}, s{sScl}, v{t}")
        e(f"v_mul_f32 v{sq}, -v{m}, v{sq+1}")
        V.release(vEe)
    else:
        e(f"v_add_f32 v{t}, s{sEpS}, v{var}")
        e(f"v_rsq_f32 v{r1}, v{t}")
        e(f"v_mul_f32 v{t}, v{r1}, v{r1}")
        e(f"v_fma_f32 v{t}, v{t}, v{var}, s{sEps}")
        e(f"v_rsq_f32 v{t}, v{t}")
        e(f"v_mul_f32 v{r1}, s{sScl}, v{r1}")
        e(f"v_mul_f32 v{sq+1}, v{r1}, v{t}")
        e(f"v_mul_f32 v{sq}, -v{m}, v{sq+1}")
    a.wait_lg("hw")
    for mt in range(4):
        for r in (2*mt, 2*mt + 1):
            e(f"v_pk_fma_f32 {vr(acc+2*r,2)}, {vr(acc+2*r,2)}, {vr(sq,2)}, {vr(sq,2)} op_sel:[0,1,0] op_sel_hi:[1,1,0]")
        for r in (2*mt, 2*mt + 1): e(f"v_cvt_pk_bf16_f32 v{hp+r}, v{acc+2*r}, v{acc+2*r+1}")
        if SWZ and mt & 1: a.ds(f"ds_write_b64 v{vTx + (mt >> 1)}, {vr(hp+2*mt,2)}", "tw")
        else: a.ds(f"ds_write_b64 v{vTw2 if mt >= 2 else vTw}, {vr(hp+2*mt,2)} offset:{32*(mt&1)}", "tw")
        if mt & 1:
            dh = mt >> 1
            for h in range(2):
                a.ds(f"ds_read_b64_tr_b16 {vr(acc+4*dh+2*h,2)}, v{vTx+2+dh if SWZ and h else TA[dh]} offset:{1024*h}", ("trh", dh))
    for dh in range(2):
        a.wait_lg(("trh", dh))
        e(f"v_lshl_add_u64 {vr(acc+4*dh,2)}, {vr(acc+4*dh,2)}, 0, {vr(g.vTg,2)}")
        a.vmem(f"buffer_store_dwordx4 {vr(acc+4*dh,4)}, v{g.vHa}, {ws}, 0 offen offset:{1024*dh} sc1", "hst")
    pace(g, 0, 0, 0)
    mw(0)
    stamp(g, 7)
    g.cp(22)
    if opt.get("b2", 0) == 3: wo_free()
    if not opt.get("be", 0): biases()
    if opt.get("cp2", 0):
        sPC = S.alloc(2, 2)
        e(f"s_getpc_b64 {sr(sPC,2)}")
        a.label("L_pc2")
        e(f"v_lshlrev_b32 v{vT0}, 7, v0")
        e(f"v_min_u32 v{vT0}, L_loopB-L_pc2, v{vT0}")
        a.vmem(f"global_load_dword v{g.vJ}, v{vT0}, {sr(sPC,2)}", "pf")
        S.release(sPC, 2)
    for r, n in ((acc, 16), (hp, 8), (sm, 2), (sq, 2), (stt, 4), (pp, 8), (vC, 1), (vSl, 1), (vTw, 1), (vTw2, 1), (TA[0], 1), (TA[1], 1), (vP, 4),
                 (g.vHa, 1), (g.vOa, 1), (g.vSa, 1)): V.release(r, n)
    for r in (sInv, sEps, sEpS, sNc): S.release(r)
    if SWZ: V.release(vTx, 4)
    print("P2 end:", st.state())

def gemm_pair(g, name, key, nsteps, vB, vI, acc, a_is_stream, stamps, sR, vSt, vLd, mid=None, scale=None, post=None, fin2=None):
    a, V, S = g.a, g.V, g.S; e = a.e; opt = g.opt; st = g.st
    srd = sr(g.sWS, 4); P = name[1]; g.inP4 = P == "4"
    NB = opt.get("nb" + P, opt.get("nb3", 8)); NH = nsteps // 2
    D = min(NH, opt.get("sk" + P, opt.get("sk3", 8)))
    seq = [(1, j) for j in range(D)] + [x for j in range(NH - D) for x in ((0, j), (1, D + j))] + [(0, j) for j in range(NH - D, NH)]
    g.seq = seq; T0 = nsteps - D
    F = V.alloc(8 * NB, 4); vP = V.alloc(4); vC = V.alloc()
    A3 = V.alloc(48, 4); TL = [acc, A3, A3 + 16, A3 + 32]
    X = V.alloc(4); vC2 = V.alloc()
    sO = S.alloc()
    L1S = opt.get("l1s", 0)
    def ldline(u, c, first=False): return f"buffer_load_dwordx4 {vr(F+8*(u%NB)+4*c,4)}, v{vB[seq[u][0]]}, {srd}, s{sO} offen offset:{c*2048}" + ("" if first and L1S & 1 else " sc1")
    if L1S in (1, 2):
        e(f"s_lshl_b32 s{sO}, s{g.sX0}, 4")
        for b in range(2): e(f"v_subrev_u32 v{vB[b]}, s{sO}, v{vB[b]}")
    def so_line(s, u): return f"s_xor_b32 s{s}, s{sR}, {seq[u][1]*4096}"
    HF = opt.get("hf", 0)
    if HF == 2:
        e(f"s_and_b32 s{sO}, s{g.sFt if P == '3' else g.sHi}, 1")
        e(f"s_lshl_b32 s{sO}, s{sO}, 11")
        for b in range(2): e(f"v_add_u32 v{vB[b]}, s{sO}, v{vB[b]}")
    def ld(u):
        e(so_line(sO, u))
        for c in range(1 if HF else 2): a.vmem(ldline(u, c, u >= SP), ("f", u))
    SP = opt.get("s" + name, 4)
    for _ in range(opt.get("z" + name, 0)): e("s_sleep 2")
    pol = f"buffer_load_dwordx2 {vr(vP,2)}, v{vI}, {srd}, 0 offen sc1"
    a.hold()
    i0 = len(a.items)
    a.vmem(pol, "poll")
    for t in range(SP): ld(t)
    if opt.get("em" + P, 0):
        seg = a.items[i0:]; j0 = i0 - opt["em" + P]
        W_ = set().union(*[x.w for x in seg]); R_ = set().union(*[x.r for x in seg])
        for x in a.items[j0 - 5:i0]:
            assert not isinstance(x, str) and x.kind != "vmem" and not (x.r | x.w) & W_ and not x.w & R_, x.text
        for x in a.items[j0:i0]:
            assert not x.op.startswith(("s_cselect", "s_cbranch", "s_addc", "s_subb", "s_cmov")), x.text
            if x.op.startswith(("s_add", "s_sub", "s_lshl", "s_lshr", "s_and", "s_or", "s_xor", "s_cmp", "s_bitcmp", "s_min", "s_bfe")): break
        del a.items[i0:]; a.items[j0:j0] = seg
    T = g.vTg
    e(f"v_xor_b32 v{X}, 0x40000000, v{T}")
    e(f"v_xor_b32 v{X+1}, {0x20000000 if P == '4' else 0}, v{T+1}")
    e(f"v_not_b32 v{X+2}, v{X}")
    e(f"v_not_b32 v{X+3}, v{X+1}")
    e(f"v_lshl_add_u64 {vr(X+2,2)}, {vr(X+2,2)}, 0, 1")
    if fin2:
        vT0, vT1 = g.vT[:2]; TW_ = V.alloc(4, 1); TR_ = V.alloc(4, 1)
        e(f"v_and_b32 v{vT0}, 7, v{g.vL}")
        e(f"v_lshrrev_b32 v{vT1}, 5, v{g.vL}")
        e(f"v_xor_b32 v{vT0}, v{vT0}, v{vT1}")
        e(f"v_and_b32 v{vT1}, 31, v{g.vL}")
        e(f"v_lshlrev_b32 v{vT1}, 7, v{vT1}")
        e(f"v_lshl_add_u32 v{vT0}, v{vT0}, 4, v{vT1}")
        e(f"s_xor_b32 s{g.sT}, s{g.sW4k}, 8192")
        e(f"v_add_u32 v{TW_}, s{g.sT}, v{vT0}")
        for j in range(1, 4): e(f"v_xor_b32 v{TW_+j}, {32*j}, v{TW_}")
        e(f"v_and_b32 v{vT0}, 3, v{g.vL}")
        e(f"v_lshlrev_b32 v{vT0}, 1, v{vT0}")
        e(f"v_bfe_u32 v{vT1}, v{g.vL}, 2, 3")
        e(f"v_xor_b32 v{vT0}, v{vT0}, v{vT1}")
        e(f"v_lshrrev_b32 v{vT1}, 2, v{g.vL}")
        e(f"v_lshlrev_b32 v{vT1}, 7, v{vT1}")
        e(f"v_lshl_add_u32 v{vT0}, v{vT0}, 4, v{vT1}")
        e(f"v_add_u32 v{TR_}, s{g.sW4k}, v{vT0}")
        e(f"v_xor_b32 v{TR_+1}, 16, v{TR_}")
        for j in range(2): e(f"v_xor_b32 v{TR_+2+j}, 8192, v{TR_+j}")
    if opt.get("al" + P, -1) >= 0:
        a.raw(f"  .p2align {opt.get('alp', 7)}")
        for _ in range(opt["al" + P]): a.raw("  s_nop 0")
    a.wait_vm("poll")
    tag_check(g, [vP], vC, e)
    lab = newlabel(g, name + "p")
    e(f"s_cbranch_vccnz {lab}")
    a.label(lab + "_b")
    L = [pol]; LF = []
    for t in range(SP): LF += [so_line(sO, t)] + [ldline(t, c) for c in range(1 if HF else 2)]
    LT = opt.get("lt" + P, 0)
    if not LT: L += LF
    if LT > 1: L = [f"s_sleep {LT - 1}"] + L
    L.append(f"s_waitcnt vmcnt({0 if LT else (1 if HF else 2)*SP})")
    tag_check(g, [vP], vC, L.append)
    L += [f"s_cbranch_vccz {lab}_k", f"s_add_u32 s{g.sSpin}, s{g.sSpin}, 1", f"s_cmp_lt_u32 s{g.sSpin}, {SPIN}", f"s_cbranch_scc1 {lab}"]
    g.hot += [lab + ":"] + ["  " + x for x in L] + [lab + "_k:"] + ["  " + x for x in (LF if LT else []) + [f"s_branch {lab}_b"]]
    a.unhold()
    stamp(g, stamps[0])
    if opt.get("tsr"): e(f"v_writelane_b32 v{g.vTS}, s{g.sSpin}, {22 + 2*(P == '4')}")
    for t in range(SP, NB - 1): ld(t)
    sO2 = S.alloc()
    a.hold()
    BU = opt.get("bu" + P, 2)
    if BU < 0: st.bar(0)
    def check(t):
        f = F + 8*(t % NB); L = []
        FR = [f] if HF else [f, f + 4]
        tag_check(g, FR, vC, L.append)
        def fin(): verify_tail(g, FR, vC, [so_line(sO2, t)] + [ldline(t, c).replace(f", s{sO} offen", f", s{sO2} offen") for c in range(1 if HF else 2)])
        n1 = opt.get("cn", 5)
        return [lambda: (a.wait_vm(("f", t)), [e(x) for x in L[:n1]]), lambda: ([e(x) for x in L[n1:]], fin())]
    R1, R3 = TL[1], TL[3]
    ev = {}
    def at(q, f): ev.setdefault(q, []).append(f)
    NOPX = opt.get("nopx", 0); XF = opt.get("xf", 0)
    def sto(rs):
        if NOPX & 1: return
        store_sel(g, [f"buffer_store_dwordx4 {vr(R1+4*r,4)}, v{vSt}, {srd}, 0 offen offset:{r*1024}" for r in rs], "px")
    if XF:
        wr = lambda r: a.ds(f"ds_write_b128 v{g.vRw[0]}, {vr(R3+4*r,4)} offset:{r*1024}", "rw")
        rd = lambda r: a.ds(f"ds_read_b128 {vr(R3+4*r,4)}, v{g.vRw[1]} offset:{r*1024}", ("rr", r))
        def ad(r):
            a.wait_lg(("rr", r))
            for h in range(4): e(f"v_add_f32 v{R1+4*r+h}, v{R1+4*r+h}, v{R3+4*r+h}")
        def cv(r):
            for h in range(2): e(f"v_cvt_pk_bf16_f32 v{R1+2*r+h}, v{R1+4*r+2*h}, v{R1+4*r+2*h+1}")
        tg = lambda r: e(f"v_lshl_add_u64 {vr(R1+2*r,2)}, {vr(R1+2*r,2)}, 0, {vr(X,2)}")
        N = None
        G = [[lambda r=r: wr(r)] for r in range(4)] if XF & 2 else [[lambda: wr(0), lambda: wr(1)], [lambda: wr(2), lambda: wr(3)]]
        G += [N] * opt.get("xg0", 1)
        G += [[lambda: (a.wait_lg("rw"), st.bar(0)), lambda: rd(0), lambda: rd(1)], [lambda: rd(2), lambda: rd(3)]]
        G += [N] * opt.get("xg1", 1)
        G += [[lambda: ad(0)], [lambda: cv(0), lambda: ad(1)], [lambda: tg(0), lambda: cv(1)], [lambda: ad(2), lambda: sto((0,))],
              [lambda: cv(2), lambda: ad(3)], [lambda: tg(2), lambda: cv(3)], [lambda: sto((1,))]]
        q = opt.get("xw", 1)
        for x in G:
            while q % 4 == 2: q += 1
            for f in x or []: at(q, f)
            q += 1
        pos = [q - 1] * 4
    else:
        q = opt.get("xw", 0)
        for r in range(4): at(q + (r >> 1), lambda r=r: a.ds(f"ds_write_b128 v{g.vRw[0]}, {vr(R3+4*r,4)} offset:{r*1024}", "rw"))
        q = opt.get("xb", 4)
        at(q, lambda: (a.wait_lg("rw"), st.bar(0), [a.ds(f"ds_read_b128 {vr(R3+4*r,4)}, v{g.vRw[1]} offset:{r*1024}", ("rr", r)) for r in range(4)]))
        q = opt.get("xa", 8)
        def add(r):
            a.wait_lg(("rr", r))
            for h in range(2): e(f"v_pk_add_f32 {vr(R1+4*r+2*h,2)}, {vr(R1+4*r+2*h,2)}, {vr(R3+4*r+2*h,2)}")
            for h in range(2): e(f"v_cvt_pk_bf16_f32 v{R1+2*r+h}, v{R1+4*r+2*h}, v{R1+4*r+2*h+1}")
            if r & 1 == 0: e(f"v_lshl_add_u64 {vr(R1+2*r,2)}, {vr(R1+2*r,2)}, 0, {vr(X,2)}")
        XD = opt.get("xd", 0)
        pos = [[q, q + 1, q + 3, q + 4], [q, q, q + 1, q + 1], [q, q + 1, q + 1, q + 3]][XD]
        for r in range(4): at(pos[r], lambda r=r: add(r))
        if opt.get("xs", 0): at(pos[3], lambda: sto((0, 1)))
        else: at(pos[1], lambda: sto((0,))); at(pos[3], lambda: sto((1,)))
    RL = R1 + 8
    pl = [f"buffer_load_dwordx4 {vr(RL+4*r,4)}, v{vLd}, {srd}, 0 offen offset:{r*1024} sc1" for r in range(2)]
    q = 4*D - opt.get("xl" + P, opt.get("xl", 11)); assert q > pos[3]
    if not NOPX & 1:
        for r in range(2): at(q, lambda r=r: a.vmem(pl[r], "pl"))
    def pfin():
        a.wait_vm("pl")
        if NOPX:
            for r in range(8): e(f"v_mov_b32 v{RL+r}, 0")
            return
        tn = g.vTn; g.vTn = X + 2
        verify(g, [RL, RL + 4], vC2, pl, opt.get("xh", 0))
        g.vTn = tn
    q = 4*D - opt.get("xk" + P, opt.get("xk", 4)); assert q % 4 != 3
    D2 = opt.get("d2", 0); assert not D2 or (q == 4*D and not fin2 and not opt.get("xu", 0) and not opt.get("tm", 0))
    if not D2: at(q, pfin)
    def unp(i):
        if D2: return
        for r in range(4*i, 4*i + 4):
            e(f"v_lshlrev_b32 v{R3+2*r}, 16, v{RL+r}")
            e(f"v_and_b32 v{R3+2*r+1}, 0xffff0000, v{RL+r}")
    done = set()
    if opt.get("xu", 0):
        def up(r):
            e(f"v_lshlrev_b32 v{R3+2*r}, 16, v{RL+r}")
            e(f"v_and_b32 v{R3+2*r+1}, 0xffff0000, v{RL+r}")
        def mu(r):
            for h in range(2): e(f"v_mul_f32 v{R3+2*r+h}, s{scale}, v{R3+2*r+h}")
            done.add(r)
        U = [lambda r=r: up(r) for r in range(2)]
        for r in range(8): U += [lambda r=r: mu(r)] + ([lambda r=r: up(r + 2)] if r < 6 else [])
        XU = opt["xu"]
        for i in range(0, len(U), XU):
            q += 1
            while q % 4 == 2: q += 1
            for f in U[i:i+XU]: at(q, f)
    else:
        for i in range(2): at(q + 1 + i, lambda i=i: unp(i))
    CK = opt.get("ck", 2)
    for f in check(0): f()
    TM = opt.get("tm" + P, opt.get("tm", 0)); assert TM <= min(D, NB - 2)
    FX = F + 8*((nsteps - NB) % NB) if TM else F
    def mf(t, c, r):
        f = F + 8*(t % NB); b, j = seq[t]
        s_, r_ = vr(f + 4*c*(not HF), 4), ar(((2*j + c)*2 + r)*4, 4)
        A, B = (s_, r_) if a_is_stream else (r_, s_)
        i = b + 2*r
        Cc = vr(TL[i], 16) if (j or c or i == 0) else "0"
        e(f"v_mfma_f32_32x32x16_bf16 {vr(TL[i],16)}, {A}, {B}, {Cc}")
    for t in range(nsteps - TM):
        if str(opt.get("tsu")) == name[1]:
            k, m = divmod(t - opt.get("tu0", 0), opt.get("tud", 4))
            if m == 0 and 0 <= k < 6: a.items.append(Ins(("s_memrealtime" if opt["ts"] == 2 else "s_memtime") + f" s[{84+2*k}:{85+2*k}]"))
        b, j = seq[t]
        if b:
            st.need(key, j)
            a.wait_lg(("tr", (key, j)))
        order = [(0, 1), (1, 1), (0, 0), (1, 0)] if j == NH - 1 and not (opt.get("xo", 0) >> b) & 1 else [(0, 0), (0, 1), (1, 0), (1, 1)]
        if j == NH - 1 and (opt.get("xo", 0) >> b) & 1: order = [(0, 1), (0, 0), (1, 1), (1, 0)]
        C = check(t + 1) if t + 1 < nsteps else None
        for n, (c, r) in enumerate(order):
            mf(t, c, r)
            if n == 0 and t + NB - 1 < nsteps: ld(t + NB - 1)
            if t == BU and n == 0: st.bar(0)
            for h in ev.pop(4*(t - T0) + n, []): h()
            if mid: mid(t, n, t + NB - 1 >= nsteps)
            if C and n in (CK, CK + 1): C[n - CK]()
    wr2 = lambda r: a.ds(f"ds_write_b128 v{g.vRw[1]}, {vr(TL[2]+4*r,4)} offset:{r*1024}", "rw")
    rd2 = lambda r: a.ds(f"ds_read_b128 {vr(FX+4*r,4)}, v{g.vRw[0]} offset:{r*1024}", ("rr", r))
    fdone = set()
    if TM:
        q = 4*(D - TM)
        for t in range(nsteps - TM, nsteps):
            C = check(t + 1) if t + 1 < nsteps else None
            for c in range(2):
                mf(t, c, 1)
                if C: C[c]()
                for h in ev.pop(q, []): h()
                q += 1
        tv = {}
        TW = opt.get("tw", 1); TN = opt.get("tn", 2); TB = opt.get("tb", 4)
        for r in range(4): tv.setdefault(TW + r // TN, []).append(lambda r=r: wr2(r))
        tv.setdefault(TB, []).append(lambda: (a.wait_lg("rw"), st.bar(opt.get("ne" + P, 0)), rd2(0), rd2(1)))
        tv.setdefault(TB + opt.get("tr", 1), []).append(lambda: (rd2(2), rd2(3)))
        k = 0
        for t in range(nsteps - TM, nsteps):
            for c in range(2):
                mf(t, c, 0)
                for h in tv.pop(k, []): h()
                for h in ev.pop(q, []): h()
                q += 1; k += 1
        for k in sorted(tv):
            for h in tv[k]: h()
    late = [h for k in sorted(ev) for h in ev[k]]
    a.unhold()
    stamp(g, stamps[1])
    if opt.get("tsr"): e(f"v_writelane_b32 v{g.vTS}, s{g.sSpin}, {23 + 2*(P == '4')}")
    if str(opt.get("tsu")) == name[1]:
        for k in range(6): e(f"v_writelane_b32 v{g.vTS}, s{84+2*k}, {16+k}")
    S.release(sO); S.release(sO2); V.release(vP, 4); V.release(vC)
    if TM:
        if post: post(0); post(1)
        a.hold()
        for h in late: h()
        a.unhold()
        for r in range(8):
            if r not in done: e(f"v_pk_mul_f32 {vr(R3+2*r,2)}, {vr(R3+2*r,2)}, {sr(scale,2)}")
        for r in range(8):
            if r % 2 == 0: a.wait_lg(("rr", r >> 1))
            e(f"v_pk_fma_f32 {vr(R3+2*r,2)}, {vr(FX+2*r,2)}, {sr(scale,2)}, {vr(R3+2*r,2)}")
        for r in range(8): e(f"v_pk_fma_f32 {vr(acc+2*r,2)}, {vr(acc+2*r,2)}, {sr(scale,2)}, {vr(R3+2*r,2)}")
    elif fin2:
        sl = DS(min(x for x in st.free if x < 4)); assert sl
        for r in range(4): a.ds(f"ds_write_b128 v{TW_+r}, {vr(TL[2]+4*r,4)}", "rw")
        a.hold()
        for h in late: h()
        a.unhold()
        for r in range(8):
            if r not in done: e(f"v_pk_mul_f32 {vr(R3+2*r,2)}, {vr(R3+2*r,2)}, {sr(scale,2)}")
        BE = opt.get("fbe", 1)
        if BE:
            a.wait_lg("rw"); st.bar(0)
            for k in range(2):
                for j in range(2): a.ds(f"ds_read_b128 {vr(F+8*k+4*j,4)}, v{TR_+j} offset:{2048*k}", ("rr", k))
        for r in range(8):
            e(f"v_pk_fma_f32 {vr(acc+2*r,2)}, {vr(acc+2*r,2)}, {sr(scale,2)}, {vr(R3+2*r,2)}")
            if r & 1: a.ds(f"ds_write_b128 v{TW_+(r>>1)}, {vr(acc+2*r-2,4)} offset:{sl}", "ow")
        if not BE: a.wait_lg("rw"); st.bar(0)
        for k in range(2):
            for j in range(2): a.ds(f"ds_read_b128 {vr(F+16+8*k+4*j,4)}, v{TR_+2+j} offset:{sl + 2048*k}", ("rr", k))
            for j in range(2):
                if not BE: a.ds(f"ds_read_b128 {vr(F+8*k+4*j,4)}, v{TR_+j} offset:{2048*k}", ("rr", k))
        for k in range(2):
            a.wait_lg(("rr", k))
            for r in range(4*k, 4*k + 4): e(f"v_pk_fma_f32 {vr(acc+2*r,2)}, {vr(F+2*r,2)}, {sr(scale,2)}, {vr(F+16+2*r,2)}")
            fin2(k)
    elif D2:
        DX = opt.get("dx" + P, opt.get("dx", 8)); sLo_ = S.alloc()
        e(f"s_lshr_b32 s{sLo_}, s{scale}, 16")
        for r in range(4): wr2(r)
        a.hold()
        for h in late: h()
        if DX >= 0 and not opt.get("dm", 0): pfin()
        a.unhold()
        for r in range(8): e(f"v_pk_mul_f32 {vr(acc+2*r,2)}, {vr(acc+2*r,2)}, {sr(scale,2)}")
        if DX >= 0 and opt.get("dm", 0): a.hold(); pfin(); a.unhold()
        dot = lambda r: e(f"v_dot2c_f32_bf16 v{acc+r}, s{scale if r & 1 else sLo_}, v{RL + (r >> 1)}")
        for r in range(max(DX, 0)): dot(r)
        if post: post(0)
        a.wait_lg("rw"); st.bar(opt.get("ne" + P, 0))
        for r in range(4): rd2(r)
        if DX < 0: a.hold(); pfin(); a.unhold()
        for r in range(max(DX, 0), 16): dot(r)
        S.release(sLo_)
        if post: post(1)
        for r in range(8):
            if r % 2 == 0: a.wait_lg(("rr", r >> 1))
            e(f"v_pk_fma_f32 {vr(acc+2*r,2)}, {vr(F+2*r,2)}, {sr(scale,2)}, {vr(acc+2*r,2)}")
    else:
        for r in range(4): wr2(r)
        a.hold()
        for h in late: h()
        a.unhold()
        for r in range(8):
            if r not in done: e(f"v_pk_mul_f32 {vr(R3+2*r,2)}, {vr(R3+2*r,2)}, {sr(scale,2)}")
        for r in range(8): e(f"v_pk_fma_f32 {vr(acc+2*r,2)}, {vr(acc+2*r,2)}, {sr(scale,2)}, {vr(R3+2*r,2)}")
        if post: post(0)
        a.wait_lg("rw"); st.bar(opt.get("ne" + P, 0))
        for r in range(4): rd2(r)
        if post: post(1)
        for r in range(8):
            if r % 2 == 0: a.wait_lg(("rr", r >> 1))
            e(f"v_pk_fma_f32 {vr(acc+2*r,2)}, {vr(F+2*r,2)}, {sr(scale,2)}, {vr(acc+2*r,2)}")
    V.release(F, 8*NB); V.release(A3, 48); V.release(X, 4); V.release(vC2)

def phase34(g):
    a, V, S = g.a, g.V, g.S; e = a.e; st = g.st; opt = g.opt
    vT0, vT1, vT2, vT3 = g.vT; vL, vN, vG = g.vL, g.vN, g.vG
    ws = sr(g.sWS, 4); sT, sT2, sX0, sX1 = g.sT, g.sT2, g.sX0, g.sX1
    g.vRw = [V.alloc(), V.alloc()]; vPx = [V.alloc(), V.alloc()]; sR4 = S.alloc()
    sUp = S.alloc(2, 2)
    e(f"s_mov_b32 s{sUp}, {f32bits(2.0**SC2):#x}")
    e(f"s_mov_b32 s{sUp+1}, {f32bits(2.0**SC2):#x}")
    acc4 = V.alloc(16, 4); hq = V.alloc(8); vB4 = [V.alloc(), V.alloc()]; vI4 = V.alloc(); vO = V.alloc(); vE = V.alloc(2)
    P4E = opt.get("p4e", 1)
    def p4setup():
        acc = acc4; vB = vB4; vI = vI4
        e(f"v_bfe_u32 v{vT1}, v{vL}, 1, 4")
        e(f"v_and_b32 v{vT0}, 14, v{vT1}")
        e(f"v_lshrrev_b32 v{vT2}, 5, v{vL}")
        e(f"v_and_b32 v{vT3}, 1, v{vL}")
        e(f"v_xor_b32 v{vT0}, v{vT0}, v{vT2}")
        e(f"v_xor_b32 v{vT0}, v{vT0}, v{vT3}")
        e(f"v_lshlrev_b32 v{vT0}, 3, v{vT0}")
        e(f"s_lshl_b32 s{sT}, s{sX1}, 6")
        e(f"s_add_u32 s{sT}, s{sT}, s{sX0}")
        e(f"v_xor_b32 v{vT0}, s{sT}, v{vT0}")
        e(f"v_lshl_add_u32 v{vT0}, v{vT1}, 7, v{vT0}")
        e(f"v_lshl_add_u32 v{vT0}, v{vT3}, 13, v{vT0}")
        for k in range(4):
            if k: e(f"v_xor_b32 v{vT1}, {16*k}, v{vT0}")
            a.ds(f"ds_read_b64 {vr(hq+2*k,2)}, v{vT1 if k else vT0} offset:2048", "hr")
        e(f"v_lshl_add_u32 v{g.vRw[0]}, v{vL}, 4, s{g.sW4k}")
        e(f"v_xor_b32 v{g.vRw[1]}, 8192, v{g.vRw[0]}")
        e(f"s_lshl3_add_u32 s{sT}, s{g.sT2i}, s{g.sLo}")
        e(f"s_lshl_b32 s{sT}, s{sT}, 11")
        e(f"v_lshl_add_u32 v{vPx[0]}, v{vL}, 4, s{sT}")
        e(f"v_xor_b32 v{vPx[1]}, 2048, v{vPx[0]}")
        e(f"s_lshl_b32 s{sR4}, s{sX0}, 6")
        e(f"s_xor_b32 s{sT}, s{g.sD3 if opt.get('u4', 0) else g.sLo}, 1")
        e(f"s_lshl2_add_u32 s{sT}, s{sT}, s{g.sKq}")
        e(f"s_mul_i32 s{sT}, s{sT}, {28*2048}")
        e(f"s_add_u32 s{sT}, s{sT}, {WS_UF}")
        e(f"v_lshrrev_b32 v{vT0}, 2, v{vL}")
        e(f"v_min_u32 v{vT0}, 13, v{vT0}")
        if opt.get("in4", 0) & 2: e(f"v_or_b32 v{vT0}, 1, v{vT0}")
        e(f"v_lshl_add_u32 v{vI}, v{vT0}, 12, s{sT}")
        if not opt.get("in4", 0) & 1:
            e(f"v_bfe_u32 v{vT0}, v{vL}, 1, 1")
            e(f"v_lshl_add_u32 v{vI}, v{vT0}, 10, v{vI}")
        e(f"v_and_b32 v{vT0}, 3, v{vL}")
        e(f"v_lshl_add_u32 v{vI}, v{vT0}, 4, v{vI}")
        e(f"v_add_u32 v{vI}, 2048, v{vI}")
        e(f"s_lshl_b32 s{sT2}, s{sX0}, 4")
        e(f"s_add_u32 s{sT}, s{sT}, s{sT2}")
        e(f"v_lshl_add_u32 v{vB[1]}, v{vL}, 4, s{sT}")
        e(f"s_bitcmp1_b32 s{g.sLo}, 0")
        e(f"s_cselect_b32 s{sT}, 1, -1")
        e(f"s_mul_i32 s{sT}, s{sT}, {112*2048}")
        e(f"v_add_u32 v{vB[0]}, s{sT}, v{vB[1]}")
        if opt.get("pd4", 0): e(f"v_add_u32 v{vI}, s{sT2}, v{vI}")
        if opt.get("pb4", 0):
            e(f"v_bfe_i32 v{vT0}, v{vL}, 2, 1")
            e(f"v_and_b32 v{vT0}, s{sT}, v{vT0}")
            e(f"v_add_u32 v{vI}, v{vT0}, v{vI}")
        e(f"s_lshl_b32 s{sT}, s{g.sHi}, 16")
        e(f"s_lshl_b32 s{sT2}, s{g.sLo}, 7")
        e(f"s_add_u32 s{sT}, s{sT}, s{sT2}")
        e(f"s_add_u32 s{sT}, s{sT}, s{sX0}")
        if opt.get("ot", 0):
            e(f"s_lshl_b32 s{sT2}, s{sX1}, 9")
            e(f"s_add_u32 s{sT}, s{sT}, s{sT2}")
            e(f"v_lshrrev_b32 v{vT0}, 2, v{vL}")
            e(f"v_lshl_add_u32 v{vO}, v{vT0}, 10, s{sT}")
            e(f"v_and_b32 v{vT0}, 3, v{vL}")
            e(f"v_lshl_add_u32 v{vO}, v{vT0}, 4, v{vO}")
        else:
            e(f"v_lshl_add_u32 v{vO}, v{g.vS4}, 10, s{sT}")
            e(f"v_lshl_add_u32 v{vO}, v{vT2}, 4, v{vO}")
        e(f"s_min_u32 s{sT}, s2, 1")
        e(f"s_lshl_b32 s{sT}, s{sT}, 23")
        e(f"s_add_u32 s{sT}, s{sT}, {WS_EP}")
        e(f"v_lshl_add_u32 v{vE}, v0, 23, s{sT}")
        e(f"v_mov_b32 v{vE+1}, s{g.sNon}")
        a.wait_vm("b2"); a.wait_lg("hr")
        e(f"v_lshlrev_b32 v{g.vb}, 16, v{g.vb}")
        e(f"v_mul_f32 v{g.vb}, s{g.sScl}, v{g.vb}")
        for r in range(8):
            e(f"v_lshlrev_b32 v{acc+2*r}, 16, v{hq+r}")
            e(f"v_and_b32 v{acc+2*r+1}, 0xffff0000, v{hq+r}")
        e(f"s_mov_b32 s{sT}, {f32bits(2.0**(SCL-SC2)):#x}")
        for r in range(16): e(f"v_fma_f32 v{acc+r}, v{acc+r}, s{sT}, v{g.vb}")
    assert not P4E or opt.get("b2", 0) == 3
    e("s_cmp_ge_u32 s2, 224")
    e("s_cbranch_scc1 L_idle")
    g.vm_idle = list(a.vm)
    def hint_addr():
        e(f"s_and_b32 s{sT}, s2, 7")
        e(f"s_lshl_b32 s{sT}, s{sT}, 7")
        e(f"s_add_u32 s{sT}, s{sT}, {WS_FL + 1024}")
    def hint_store():
        hint_addr()
        e(f"s_cmp_lt_u32 s2, {8*opt.get('hq', 1)}")
        e(f"s_cselect_b32 s{sT}, s{sT}, {WS_SIZE}")
        e(f"v_lshl_add_u32 v{vT2}, v0, 23, s{sT}")
        e(f"v_mov_b32 v{vT3}, s{g.sNon}")
        a.vmem(f"buffer_store_dword v{vT3}, v{vT2}, {ws}, 0 offen", "hint")
    def idle():
        main_items, vm0, lg0, cyc0 = a.items, list(a.vm), list(a.lg), a.cyc
        a.items = []; a.vm = []; a.lg = []
        a.label("L_idle")
        if opt.get("iwf", 0): assert set(g.vm_idle) <= {"hst", "pf"}, g.vm_idle
        else: a.wait_vm()
        a.wait_lg()
        if opt.get("b2", 0) == 2: e("s_barrier")
        while g.niw < opt.get("idg", 7): g.IW()
        if P4E: p4setup(); e("s_barrier")
        if opt.get("tsi"): stamp(g, 8)
        if opt.get("iwt", 1): a.wait_vm()
        for _ in range(opt.get("iwz", 0)): e("s_sleep 4")
        if opt.get("tsi"): stamp(g, 9)
        assert not st.part and not st.dpart and st.nx == 15
        o2 = [(j + opt.get("iws", 0)) % 7 for j in range(7)]
        sl2 = [st.slot_of[("w2", j)] for j in o2]; assert len(set(sl2)) == 7
        s2_ = copy.copy(st); s2_.items = st.items[:8] + [("w2", j) for j in o2]; s2_.free = sl2; s2_.fl = []; s2_.nx = 8; s2_.dlog = []; s2_.slot_of = {}
        HP = opt.get("hp", 0)
        hl = lambda: a.vmem(f"buffer_load_dword v{vT3}, v{vT2}, {ws}, 0 offen sc1", "hint")
        if HP:
            hint_addr()
            e(f"v_mov_b32 v{vT2}, s{sT}")
            e(f"s_mov_b32 s{sT2}, 0")
            s2_.issue(HP); hl()
        s2_.issue(7 - HP)
        for it, c in st.dlog:
            if it[0] == "w2" and c == 0: s2_.need("w2", 2*it[1])
        if HP:
            for en in st.fl:
                if en.sync: a.wait_vm(en.it)
        s2_.bar(0 if HP else 7)
        for it, c in st.dlog:
            if it[0] == "w2" and c == 1: s2_.need("w2", 2*it[1] + 1)
        if opt.get("tsi"): a.wait_vm(); stamp(g, 11)
        if HP:
            assert not opt.get("iws", 0)
            a.wait_vm("hint")
            e(f"v_xor_b32 v{vT3}, s{g.sNon}, v{vT3}")
            e(f"v_cmp_gt_u32 vcc, 16, v{vT3}")
            e(f"s_cbranch_vccnz L_join")
        if opt.get("hint", 1):
            if not HP:
                hint_addr()
                e(f"v_mov_b32 v{vT2}, s{sT}")
                e(f"s_mov_b32 s{sT2}, 0")
            a.label("L_hint")
            hl()
            e(f"s_add_u32 s{sT2}, s{sT2}, 1")
            a.wait_vm()
            e(f"v_xor_b32 v{vT3}, s{g.sNon}, v{vT3}")
            e(f"v_cmp_gt_u32 vcc, 16, v{vT3}")
            e(f"s_cbranch_vccnz L_hint_ok")
            e(f"s_cmp_lt_u32 s{sT2}, 12")
            e(f"s_cbranch_scc1 L_hint")
            a.label("L_hint_ok")
        for _ in range(opt.get("zi", 0)): e("s_sleep 8")
        a.wait_vm(); a.wait_lg()
        if not HP: e("s_barrier")
        e("s_branch L_join")
        g.idle_items = a.items
        a.items, a.vm, a.lg, a.cyc = main_items, vm0, lg0, cyc0
    X3 = opt.get("tsx") == 3
    if opt.get("iv7", 0): pace(g, 8 + opt.get("nw2", 0), opt.get("dd", 12), opt["iv7"], opt.get("lag7", 8))
    else: st.upto(8)
    if X3: stamp(g, 9, True)
    acc = V.alloc(16, 4)
    a.wait_vm("b1")
    for r in range(8):
        e(f"v_lshlrev_b32 v{acc+2*r}, 16, v{g.bq+r}")
        e(f"v_and_b32 v{acc+2*r+1}, 0xffff0000, v{g.bq+r}")
    for r in range(16): e(f"v_mul_f32 v{acc+r}, s{g.sScl}, v{acc+r}")
    V.release(g.bq, 8)
    vB = [V.alloc(), V.alloc()]; vI = V.alloc(); vUa = V.alloc()
    e(f"s_xor_b32 s{sT}, s{g.sD3}, 1")
    e(f"s_lshl2_add_u32 s{sT}, s{sT}, s{g.sKq}")
    e(f"s_lshl_b32 s{sT}, s{sT}, 16")
    e(f"s_add_u32 s{sT}, s{sT}, {WS_HH}")
    e(f"v_lshrrev_b32 v{vT0}, 1, v{vL}")
    if opt.get("in3", 0): e(f"v_or_b32 v{vT0}, {opt['in3']}, v{vT0}")
    e(f"v_lshl_add_u32 v{vI}, v{vT0}, 11, s{sT}")
    e(f"v_and_b32 v{vT0}, 3, v{vL}")
    e(f"v_lshl_add_u32 v{vI}, v{vT0}, 4, v{vI}")
    e(f"v_add_u32 v{vI}, 1024, v{vI}")
    e(f"s_lshl_b32 s{sT2}, s{sX0}, 4")
    e(f"s_add_u32 s{sT}, s{sT}, s{sT2}")
    e(f"v_lshl_add_u32 v{vB[1]}, v{vL}, 4, s{sT}")
    e(f"v_xor_b32 v{vB[0]}, {1 << 18}, v{vB[1]}")
    if opt.get("pb3", 0):
        e(f"v_and_b32 v{vT0}, 16, v{vL}")
        e(f"v_lshlrev_b32 v{vT0}, 14, v{vT0}")
        e(f"v_xor_b32 v{vI}, v{vT0}, v{vI}")
    e(f"s_mul_i32 s{sT}, s{g.sD3}, 28")
    e(f"s_add_u32 s{sT}, s{sT}, s{g.sFt}")
    e(f"s_lshl_b32 s{sT}, s{sT}, 13")
    e(f"s_add_u32 s{sT}, s{sT}, s{sT2}")
    e(f"s_lshl_b32 s{sT2}, s{sX1}, 6")
    e(f"s_add_u32 s{sT}, s{sT}, s{sT2}")
    e(f"s_add_u32 s{sT}, s{sT}, {WS_UF}")
    e(f"v_lshl_add_u32 v{vUa}, v{vL}, 4, s{sT}")
    c0 = -2.0 * math.sqrt(2.0 / math.pi) * math.log2(math.e); c1 = c0 * 0.044715
    cc = V.alloc(2)
    e(f"v_mov_b32 v{cc}, {f32bits(c0):#x}")
    e(f"v_mov_b32 v{cc+1}, {f32bits(c1):#x}")
    if P4E: p4setup()
    pace(g, 0, 0, 0)
    while st.nx < 8 + opt.get("nw2", 0) or st.part:
        assert st.can_issue(), "no slot"
        st.tick(15, 16, opt.get("lag7", 8))
    st.finish()
    while st.ndrained < opt.get("dd", 12) and st.can_drain(opt.get("lag8", 0)): st.drain_op(8, opt.get("lag8", 0))
    print("P3 start:", st.state())
    if X3: stamp(g, 10, True)
    def mid3(t, n, tail):
        st.dlim["w2"] = len([1 for b, j in g.seq[:t] if not b])
        tail = tail and t >= opt.get("tt3", 0)
        lag = len(a.vm) - 1 - a._cnt(a.vm, ("f", t + 1)) if a._cnt(a.vm, ("f", t + 1)) >= 0 else opt.get("lag3", 8)
        if n in (opt.get("dn", 0), 3) and (st.dpart or st.ndrained < 16 + opt.get("dm3", 14)): st.drain_op(4, lag)
        if (tail or t >= opt.get("tw2", 99)) and n in ((0, 3) if tail else (3,)) and (st.part or st.nx < 8 + opt.get("nw3", 7)):
            if st.part == 0: st.issue_op(); st.issue_op()
            st.issue_op()
            if st.part and tail and opt.get("tdn", 1) > 1: st.issue_op()
    stamp(g, 8)
    DJ = 16 + opt.get("dj", 5)
    NJ = 15
    def tick(dr=True): st.tick(NJ, DJ if dr else 0, opt.get("lag4", 8))
    def post3(ph):
        st.dlim["w2"] = 14
        for _ in range(opt.get(f"e{ph}", [3, 3, 0, 0, 0][ph])): tick(ph > 0)
        if ph == 1: a.bg = [tick] * 99; a.interval = opt.get("iv4", 48); a.last_bg = a.cyc
        if ph == opt.get("estop", 9): a.bg = []
    gemm_pair(g, "p3", "w1", 32, vB, vI, acc, False, (9, 10), g.sR14, vPx[0], vPx[1], mid3, sUp, post=post3)
    V.release(g.vD["w1"], 4)
    print("P3 end:", st.state())
    a.tcyc = 16
    g.cp(23)
    post3(2)
    t = V.alloc(16, 4)
    for r in range(8):
        e(f"v_pk_mul_f32 {vr(t+2*r,2)}, {vr(acc+2*r,2)}, {vr(acc+2*r,2)}")
    for r in range(8):
        e(f"v_pk_fma_f32 {vr(t+2*r,2)}, {vr(t+2*r,2)}, {vr(cc,2)}, {vr(cc,2)} op_sel:[0,1,0] op_sel_hi:[1,1,0]")
    for r in range(8):
        e(f"v_pk_mul_f32 {vr(t+2*r,2)}, {vr(t+2*r,2)}, {vr(acc+2*r,2)}")
    dst = V.alloc(8, 4)
    for k in range(2):
        post3(3 + k)
        for r in range(8*k, 8*k + 8): e(f"v_exp_f32 v{t+r}, v{t+r}")
        for r in range(4*k, 4*k + 4):
            e(f"v_pk_fma_f32 {vr(t+2*r,2)}, {vr(t+2*r,2)}, {sr(sUp,2)}, {sr(sUp,2)}")
        for r in range(8*k, 8*k + 8): e(f"v_rcp_f32 v{t+r}, v{t+r}")
        for r in range(4*k, 4*k + 4):
            e(f"v_pk_mul_f32 {vr(t+2*r,2)}, {vr(t+2*r,2)}, {vr(acc+2*r,2)}")
        for r in range(4): e(f"v_cvt_pk_bf16_f32 v{dst+4*k+r}, v{t+8*k+2*r}, v{t+8*k+2*r+1}")
        e(f"v_lshl_add_u64 {vr(dst+4*k,2)}, {vr(dst+4*k,2)}, 0, {vr(g.vTg,2)}")
        a.vmem(f"buffer_store_dwordx4 {vr(dst+4*k,4)}, v{vUa}, {ws}, 0 offen offset:{2048*k} sc1", "ust")
    a.bg = []
    stamp(g, 11)
    print("gelu end:", st.state())
    V.release(acc, 16); V.release(t, 16); V.release(cc, 2)
    for r in vB + [vI, vUa]: V.release(r)
    hs = opt.get("hint", 1)
    while st.nx < NJ or st.part:
        if hs and st.nx >= NJ - hs and not st.part: hint_store(); hs = 0
        assert st.can_issue(), "no slot"
        tick()
    if hs: hint_store()
    st.finish()
    if opt.get("bj", -1) >= 0: st.bar(opt["bj"])
    while st.ndrained < DJ and st.can_drain(opt.get("lagj", 0)): st.drain_op(8, opt.get("lagj", 0))
    print("join:", st.state())
    idle()
    a.label("L_join")
    V.release(dst, 8)
    if not P4E: p4setup()
    acc = acc4; vB = vB4; vI = vI4
    a.wait_lg()
    if opt.get("wack", 0): a.wait_vm("ust")
    if opt.get("junk", 0):
        e(f"s_lshl_b32 s{sT}, s2, 12")
        e(f"s_add_u32 s{sT}, s{sT}, {16 << 20}")
        e(f"v_lshl_add_u32 v{vT0}, v0, 4, s{sT}")
        for i in range(opt["junk"]):
            a.vmem(f"global_store_dwordx4 v{vT0}, {vr(acc,4)}, {sr(g.sWS,2)}" + (" sc1" if opt.get("junks") else ""), "junk")
            e(f"v_add_u32 v{vT0}, {1 << 20}, v{vT0}")
    stamp(g, 12)
    def mid4(t, n, tail):
        if n in (opt.get("dn", 0), 3): st.drain_op(4)
    o8 = V.alloc(8)
    def fin2(k):
        o = o8 + 4*k
        for r in range(4): e(f"v_cvt_pk_bf16_f32 v{o+r}, v{acc+8*k+2*r}, v{acc+8*k+2*r+1}")
        if k: e(f"s_mov_b32 s{sT}, 16384")
        a.vmem(f"buffer_store_dwordx4 {vr(o,4)}, v{vO}, {sr(g.sOUT,4)}, {f's{sT}' if k else 0} offen", "out")
    gemm_pair(g, "p4", "w2", 28, vB, vI, acc, True, (13, 14), sR4, vPx[1], vPx[0], mid4, sUp, fin2=fin2 if opt.get("ot", 0) else None)
    for k in range(0 if opt.get("ot", 0) else 2):
        o = o8 + 4*k
        for r in range(4): e(f"v_cvt_pk_bf16_f32 v{o+r}, v{acc+8*k+2*r}, v{acc+8*k+2*r+1}")
        e(f"v_permlane32_swap_b32 v{o}, v{o+2}")
        e(f"v_permlane32_swap_b32 v{o+1}, v{o+3}")
        a.vmem(f"buffer_store_dwordx4 {vr(o,4)}, v{vO}, {sr(g.sOUT,4)}, 0 offen offset:{32*k}" + ["", " sc1", " nt", " sc0 sc1", " sc1 nt", " sc0 sc1 nt"][opt.get("outm", 0)], "out")
    a.vmem(f"buffer_store_dword v{vE+1}, v{vE}, {ws}, 0 offen sc1", "ep")
    if opt.get("tsw"): a.wait_vm("out" if opt["tsw"] == 1 else None)
    if opt.get("tse"): stamp(g, 8, True)

if __name__ == "__main__":
    opt = {}
    out = None
    for x in sys.argv[1:]:
        k, v = x.split("=")
        if k == "out": out = v
        else: opt[k] = int(v)
    txt, g = gen(opt)
    out = out or "v12.s"
    open(out, "w").write(txt)
    print("wrote", out, "lines", txt.count("\n"), "nops", g.a.nnop, "vgpr hi", g.V.hi, "sgpr hi", g.S.hi)
```
